```python
import torch

def _softmax(x, axis=-1):
    return torch.softmax(x, dim=axis)
def _gelu(x):
    return torch.nn.functional.gelu(x, approximate="tanh")
def _silu(x):
    return torch.nn.functional.silu(x)
def _sigmoid(x):
    return torch.sigmoid(x)
def _layernorm(x, axis=-1, eps=1e-5):
    m = x.mean(dim=axis, keepdim=True)
    v = x.var(dim=axis, keepdim=True, unbiased=False)
    return (x - m) / torch.sqrt(v + eps)
def _scatter_add(tgt, idx, src, axis=0):
    return tgt.clone().index_add_(axis, idx, src)
def _segment_sum(src, seg, n):
    out = torch.zeros((n,) + src.shape[1:], dtype=src.dtype)
    return out.index_add_(0, seg, src)
def _pad(x, pw):
    flat = tuple(v for pair in reversed(pw) for v in pair)
    return torch.nn.functional.pad(x, flat)

kernel_name = 'recurrent_scan__sliding_block__glu_gated_swiglu__prompt'

def setup_inputs():

    _w = (lambda a: (lambda t: t.to(torch.bfloat16) if t.is_floating_point() else t)(torch.as_tensor(a)))
    def _A_setup():
        B, S, D = 1, 2048, 512
        return {
            "x": _w((lambda *s: torch.randn(*s, dtype=torch.bfloat16) * 0.05)(B, S, D)),
            "wqkv": _w((lambda *s: torch.randn(*s, dtype=torch.bfloat16) * 0.2)(D, 3 * D)),
            "wo": _w((lambda *s: torch.randn(*s, dtype=torch.bfloat16) * 0.2)(D, D)),
        }
    _A_in = _A_setup()

    def _B_setup():
        B, S, D, F = 1, 2048, 512, 1376
        return {
            "x": _w((lambda *s: torch.randn(*s, dtype=torch.bfloat16) * 0.05)(B, S, D)),
            "w1": _w((lambda *s: torch.randn(*s, dtype=torch.bfloat16) * 0.1)(D, F) * (2.0 / D) ** 0.5),
            "w3": _w((lambda *s: torch.randn(*s, dtype=torch.bfloat16) * 0.1)(D, F) * (2.0 / D) ** 0.5),
            "w2": _w((lambda *s: torch.randn(*s, dtype=torch.bfloat16) * 0.1)(F, D) * (2.0 / F) ** 0.5),
        }
    _B_in = _B_setup()

    return {
        "A_x": _A_in["x"],
        "A_wqkv": _A_in["wqkv"],
        "A_wo": _A_in["wo"],
        "B_x": _B_in["x"],
        "B_w1": _B_in["w1"],
        "B_w3": _B_in["w3"],
        "B_w2": _B_in["w2"],
    }

def reference(A_x, A_wqkv, A_wo, B_x, B_w1, B_w3, B_w2):
    def _A_ref(x, wqkv, wo):
        B, S, D = x.shape
        H = 32; Dh = D // H; W = 256
        qkv = (lambda x, *d: x.permute(*d))((x @ wqkv).reshape(B, S, 3, H, Dh), 2, 0, 3, 1, 4)
        q, k, v = qkv[0], qkv[1], qkv[2]
        scores = torch.einsum("bhqd,bhkd->bhqk", q, k) * (Dh ** -0.5)
        idx = torch.arange(S)
        mask = (idx[:, None] - idx[None, :] >= 0) & (idx[:, None] - idx[None, :] < W)
        scores = torch.where(mask[None, None], scores, -1e9)
        p = _softmax(scores, axis=-1)
        o = torch.einsum("bhqk,bhkd->bhqd", p, v)
        return (lambda x, *d: x.permute(*d))(o, 0, 2, 1, 3).reshape(B, S, D) @ wo

    def _B_ref(x, w1, w3, w2):
        gate = torch.einsum("bsd,df->bsf", x, w1)
        up = torch.einsum("bsd,df->bsf", x, w3)
        h = _silu(gate) * up
        out = torch.einsum("bsf,fd->bsd", h, w2)
        return out

    x = A_x
    xn = _layernorm(x, axis=-1)
    s = _A_ref(xn, A_wqkv, A_wo)
    g = _silu(_B_ref(xn, B_w1, B_w3, B_w2))
    return x + s * g
```

```python
import re

TRANS = ("v_exp_f32", "v_log_f32", "v_rcp_f32", "v_rsq_f32", "v_sqrt_f32", "v_sin_f32",
         "v_cos_f32", "v_rcp_iflag_f32", "v_exp_f16", "v_rcp_f16")

_REG_RE = re.compile(r"^(v|a|s|ttmp)(\d+)$")
_RNG_RE = re.compile(r"^(v|a|s|ttmp)\[(\d+):(\d+)\]$")


def parse_regs(tok):
    t = tok.strip()
    if t.startswith("-"):
        t = t[1:]
    m = re.match(r"^abs\((.*)\)$", t)
    if m:
        t = m.group(1)
    if t.startswith("|") and t.endswith("|"):
        t = t[1:-1]
    if t in ("vcc",):
        return [("s", 106), ("s", 107)]
    if t == "vcc_lo":
        return [("s", 106)]
    if t == "vcc_hi":
        return [("s", 107)]
    if t in ("exec",):
        return [("s", 126), ("s", 127)]
    if t == "exec_lo":
        return [("s", 126)]
    if t == "exec_hi":
        return [("s", 127)]
    if t == "m0":
        return [("s", 124)]
    m = _REG_RE.match(t)
    if m:
        return [(m.group(1), int(m.group(2)))]
    m = _RNG_RE.match(t)
    if m:
        return [(m.group(1), i) for i in range(int(m.group(2)), int(m.group(3)) + 1)]
    return []


VCC = [("s", 106), ("s", 107)]
EXEC = [("s", 126), ("s", 127)]
M0 = [("s", 124)]
SCC = [("scc", 0)]


class Ins:
    __slots__ = ("text", "mn", "kind", "reads", "writes", "passes", "srcC", "srcAB", "lds_dma",
                 "storedata", "ops")

    def __init__(self):
        self.srcC = []
        self.srcAB = []
        self.passes = 0
        self.lds_dma = False
        self.storedata = []


def split_ops(rest):
    parts = [p.strip() for p in rest.split(",")] if rest.strip() else []
    mods = ""
    if parts:
        last = parts[-1]
        sp = last.split(None, 1)
        if len(sp) == 2:
            parts[-1] = sp[0]
            mods = sp[1]
    return parts, mods


def classify(text):
    ins = Ins()
    ins.text = text
    sp = text.strip().split(None, 1)
    mn = sp[0]
    rest = sp[1] if len(sp) > 1 else ""
    ins.mn = mn
    ops, mods = split_ops(rest)
    ins.ops = ops
    ins.reads = []
    ins.writes = []
    R = lambda i: parse_regs(ops[i]) if i < len(ops) else []
    allregs = lambda lo=0: [r for o in ops[lo:] for r in parse_regs(o)]

    if mn in ("s_waitcnt", "s_nop", "s_barrier", "s_endpgm", "s_setprio", "s_sleep", "s_sethalt"):
        ins.kind = "special"
    elif mn in ("s_branch",) or mn.startswith("s_cbranch"):
        ins.kind = "branch"
        if mn.startswith("s_cbranch_scc"):
            ins.reads = list(SCC)
        elif mn.startswith("s_cbranch_vcc"):
            ins.reads = list(VCC)
        elif mn.startswith("s_cbranch_exec"):
            ins.reads = list(EXEC)
    elif mn.startswith("s_load") or mn.startswith("s_buffer_load"):
        ins.kind = "smem"
        ins.writes = R(0)
        ins.reads = allregs(1)
    elif mn in ("s_memtime", "s_memrealtime"):
        ins.kind = "smem"
        ins.writes = R(0)
    elif mn.startswith("s_cmp") or mn.startswith("s_bitcmp"):
        ins.kind = "salu"
        ins.reads = allregs(0)
        ins.writes = list(SCC)
    elif mn.startswith("s_"):
        ins.kind = "salu"
        ins.writes = R(0) + list(SCC)
        ins.reads = allregs(1)
        if mn.startswith("s_cselect") or mn.startswith("s_addc") or mn.startswith("s_subb") or mn.startswith("s_cmov"):
            ins.reads += list(SCC)
        if "saveexec" in mn:
            ins.writes += list(EXEC)
            ins.reads += list(EXEC)
        if mn in ("s_mov_b32", "s_mov_b64", "s_cselect_b32", "s_cselect_b64", "s_movk_i32",
                  "s_mul_i32", "s_mul_hi_u32", "s_getpc_b64"):
            ins.writes = R(0)
    elif mn.startswith("v_mfma") or mn.startswith("v_smfmac"):
        ins.kind = "mfma"
        ins.writes = R(0)
        ins.srcAB = R(1) + R(2)
        ins.srcC = R(3)
        ins.reads = ins.srcAB + ins.srcC
        if "32x32x16" in mn or "32x32x8" in mn:
            ins.passes = 8
        elif "16x16x32" in mn or "16x16x16" in mn:
            ins.passes = 4
        else:
            raise ValueError("unknown mfma passes: " + mn)
    elif mn.startswith("v_"):
        ins.kind = "valu"
        base = mn.replace("_e32", "").replace("_e64", "")
        if base.startswith("v_cmpx"):
            raise ValueError("v_cmpx not supported by hazard tracker")
        if base.startswith("v_cmp"):
            ins.writes = R(0)
            ins.reads = allregs(1)
        elif base in ("v_readfirstlane_b32", "v_readlane_b32"):
            ins.writes = R(0)
            ins.reads = allregs(1)
        elif base in ("v_permlane32_swap_b32", "v_permlane16_swap_b32", "v_swap_b32"):
            ins.writes = R(0) + R(1)
            ins.reads = R(0) + R(1)
        elif base in ("v_add_co_u32", "v_sub_co_u32", "v_subrev_co_u32"):
            ins.writes = R(0) + R(1)
            ins.reads = allregs(2)
        elif base in ("v_addc_co_u32", "v_subb_co_u32"):
            ins.writes = R(0) + R(1)
            ins.reads = allregs(2)
        elif base == "v_nop":
            pass
        else:
            ins.writes = R(0)
            ins.reads = allregs(1)
            if base in ("v_fmac_f32", "v_dot2c_f32_bf16", "v_pk_fmac_f16", "v_fmac_f16",
                        "v_writelane_b32", "v_dot2c_f32_f16"):
                ins.reads += R(0)
            if base == "v_cndmask_b32" and len(ops) == 3:
                ins.reads += list(VCC)
        if base in TRANS:
            ins.kind = "trans"
        if "dpp" in mods or "row_" in mods or "quad_perm" in mods or "wave_" in mods or mn.endswith("_dpp"):
            ins.kind = "dpp"
    elif mn.startswith("global_load_lds") :
        ins.kind = "vmem_load"
        ins.lds_dma = True
        ins.reads = allregs(0) + list(M0)
    elif mn.startswith("global_load") or mn.startswith("buffer_load"):
        ins.kind = "vmem_load"
        if re.search(r"(^|\s)lds(\s|$)", mods):
            ins.lds_dma = True
            ins.reads = allregs(0) + list(M0)
        else:
            ins.writes = R(0)
            ins.reads = allregs(1)
    elif mn.startswith("global_store") or mn.startswith("buffer_store"):
        ins.kind = "vmem_store"
        ins.reads = allregs(0)
        if mn.startswith("global_store"):
            ins.storedata = R(1)
        else:
            ins.storedata = R(0)
        if not (mn.endswith("x4") or mn.endswith("x3")):
            ins.storedata = []
    elif mn.startswith("global_atomic") or mn.startswith("buffer_atomic"):
        ins.kind = "vmem_store"
        ins.reads = allregs(0)
    elif mn.startswith("ds_read") or mn.startswith("ds_bpermute") or mn.startswith("ds_permute") or mn.startswith("ds_swizzle"):
        ins.kind = "ds_read"
        ins.writes = R(0)
        ins.reads = allregs(1)
    elif mn.startswith("ds_write") or mn.startswith("ds_add") :
        ins.kind = "ds_write"
        ins.reads = allregs(0)
    else:
        raise ValueError("unclassified instruction: " + text)
    return ins


AB_TBL = {2: 5, 4: 8, 8: 12, 16: 20}
COVL_TBL = {2: 4, 4: 6, 8: 10, 16: 18}
CWAR_TBL = {2: 1, 4: 3, 8: 7, 16: 15}

MAXVM = 63
MAXLGKM = 15


def ov(a, b):
    if not a or not b:
        return False
    sb = set(b)
    return any(r in sb for r in a)


class Asm:
    def __init__(self):
        self.out = []
        self.hist = []
        self.states = 0
        self.vmq = []
        self.lgq = []
        self.smem_out = []
        self.vm_allowed = 10 ** 9
        self.stats = {"nops": 0, "waits": 0}
        self.auto = True

    def raw(self, line):
        self.out.append(line)

    def comment(self, c):
        self.out.append("    ; " + c)

    def label(self, name):
        self.drain_all()
        self.out.append(name + ":")
        self.hist = []

    def _need(self, P, X):
        n = 0
        pk = P.kind
        if pk in ("valu", "trans", "dpp"):
            pw_v = [r for r in P.writes if r[0] in ("v", "a")]
            pw_s = [r for r in P.writes if r[0] == "s"]
            if X.kind == "mfma" and ov(pw_v, X.reads):
                n = max(n, 2)
            if pw_s:
                if X.kind in ("valu", "trans", "dpp", "mfma"):
                    if ov(pw_s, X.reads):
                        n = max(n, 2)
                        if X.mn.startswith("v_readlane") or X.mn.startswith("v_writelane"):
                            n = max(n, 4)
                        if X.mn.startswith("v_div_fmas"):
                            n = max(n, 4)
                if X.kind in ("vmem_load", "vmem_store", "ds_read", "ds_write") and ov(pw_s, X.reads):
                    n = max(n, 5)
            if pw_v:
                if X.mn.startswith("v_readlane") or X.mn.startswith("v_readfirstlane"):
                    if ov(pw_v, X.reads):
                        n = max(n, 1)
                if X.mn.startswith("v_permlane") and ov(pw_v, X.reads):
                    n = max(n, 2)
                if X.kind == "dpp" and ov(pw_v, X.reads):
                    n = max(n, 2)
                if pk == "trans" and X.kind in ("valu", "dpp", "mfma", "trans") and ov(pw_v, X.reads):
                    n = max(n, 1)
        if pk == "mfma":
            D = P.writes
            p = P.passes
            if X.kind == "mfma":
                if ov(D, X.srcAB):
                    n = max(n, AB_TBL[p])
                if ov(D, X.srcC) or ov(D, X.writes):
                    same = (X.srcC == D and X.passes == p and X.writes == D)
                    if same:
                        n = max(n, 0 if p >= 4 else 2)
                    else:
                        n = max(n, COVL_TBL[p])
            else:
                if ov(D, X.reads) or ov(D, X.writes):
                    n = max(n, AB_TBL[p])
                if X.kind in ("valu", "trans", "dpp") and ov(P.srcC, X.writes):
                    n = max(n, CWAR_TBL[p])
        if pk == "vmem_store" and P.storedata:
            if ov(P.storedata, X.writes):
                n = max(n, 2 if X.kind in ("valu", "trans", "dpp") else 1)
        if pk == "salu" and ov(P.writes, M0):
            if X.lds_dma or X.mn.startswith("s_movrel") or "addtid" in X.mn:
                n = max(n, 1)
        return n

    def _pad_for(self, X):
        need_nops = 0
        for (st, P) in self.hist:
            d = self.states - st
            if d > 20:
                continue
            n = self._need(P, X)
            if n > d:
                need_nops = max(need_nops, n - d)
        while need_nops > 0:
            k = min(need_nops, 16)
            self.out.append("    s_nop %d" % (k - 1))
            self.states += k
            self.stats["nops"] += k
            need_nops -= k

    def drain_hazards(self):
        need = 0
        for (st, P) in self.hist:
            d = self.states - st
            if P.kind == "mfma":
                n = AB_TBL[P.passes]
            elif P.kind in ("valu", "trans", "dpp"):
                n = 5
            elif P.kind == "vmem_store":
                n = 2
            elif P.kind == "salu":
                n = 1
            else:
                n = 0
            if n > d:
                need = max(need, n - d)
        while need > 0:
            k = min(need, 16)
            self.out.append("    s_nop %d" % (k - 1))
            self.states += k
            self.stats["nops"] += k
            need -= k

    def _wait(self, vm=None, lgkm=None):
        parts = []
        if vm is not None:
            vm = min(vm, MAXVM)
            parts.append("vmcnt(%d)" % vm)
        if lgkm is not None:
            lgkm = min(lgkm, MAXLGKM)
            parts.append("lgkmcnt(%d)" % lgkm)
        if not parts:
            return
        self.out.append("    s_waitcnt " + " ".join(parts))
        self.states += 1
        self.stats["waits"] += 1
        if vm is not None:
            while len(self.vmq) > vm:
                self.vmq.pop(0)
        if lgkm is not None:
            if lgkm == 0:
                self.smem_out = []
            while len(self.lgq) > lgkm:
                self.lgq.pop(0)

    def wait_vm(self, n):
        if len(self.vmq) > n:
            self._wait(vm=n)

    def wait_lgkm(self, n):
        if len(self.lgq) > n or (n == 0 and self.smem_out):
            self._wait(lgkm=n)

    def wait_tag(self, tag):
        idx = -1
        for i, e in enumerate(self.vmq):
            if e.get("tag") == tag:
                idx = i
        if idx >= 0:
            self._wait(vm=len(self.vmq) - 1 - idx)

    def drain_all(self):
        vm = 0 if self.vmq else None
        lg = 0 if (self.lgq or self.smem_out) else None
        self._wait(vm, lg)
        self.drain_hazards()

    def _auto_wait(self, X):
        regs = list(X.reads) + list(X.writes)
        if not regs:
            return
        sr = set(regs)
        idx = -1
        for i, e in enumerate(self.vmq):
            if e["dst"] and any(r in sr for r in e["dst"]):
                idx = i
        vm = None
        if idx >= 0:
            vm = len(self.vmq) - 1 - idx
        lg = None
        if self.smem_out and any(r in sr for r in self.smem_out):
            lg = 0
        else:
            idx = -1
            for i, e in enumerate(self.lgq):
                if e["dst"] and any(r in sr for r in e["dst"]):
                    idx = i
            if idx >= 0:
                lg = len(self.lgq) - 1 - idx
                if self.smem_out:
                    lg = 0
        if vm is not None or lg is not None:
            self._wait(vm, lg)

    def __call__(self, text, tag=None):
        text = text.strip()
        X = classify(text)
        if X.kind == "special":
            if X.mn == "s_waitcnt":
                m = re.search(r"vmcnt\((\d+)\)", text)
                l = re.search(r"lgkmcnt\((\d+)\)", text)
                self._wait(int(m.group(1)) if m else None, int(l.group(1)) if l else None)
                return X
            if X.mn == "s_nop":
                n = int(X.ops[0], 0)
                self.out.append("    " + text)
                self.states += n + 1
                return X
            if X.mn == "s_endpgm":
                self.out.append("    " + text)
                self.hist = []
                self.vmq = []
                self.lgq = []
                self.smem_out = []
                return X
            self.out.append("    " + text)
            self.states += 1
            return X
        if X.kind == "branch":
            self.drain_all()
            self.out.append("    " + text)
            self.states += 1
            return X
        self._auto_wait(X)
        self._pad_for(X)
        self.out.append("    " + text)
        self.states += 1
        self.hist.append((self.states, X))
        if len(self.hist) > 64:
            self.hist = self.hist[-40:]
        if X.kind in ("vmem_load", "vmem_store"):
            self.vmq.append({"dst": list(X.writes), "tag": tag})
            assert len(self.vmq) <= 63 or True
        elif X.kind in ("ds_read", "ds_write"):
            self.lgq.append({"dst": list(X.writes)})
        elif X.kind == "smem":
            self.smem_out += list(X.writes)
        return X

    def text(self):
        return "\n".join(self.out) + "\n"
```

```python
import sys
sys.path.insert(0, "work")
from asmgen import Asm

QF_OFF = 0
KF_OFF = 2 << 20
VF_OFF = 4 << 20
H_OFF = 8 << 20
O_OFF = 16 << 20
WS_BYTES = 268435456

S = 2048
D = 512
F = 1376


def kernel_header(name):
    return (".p2align 8\n.globl %s\n.type %s,@function\n%s:\n" % (name, name, name))


def kernel_desc(name, vgpr, sgpr, agpr=0, accum=None):
    if accum is None:
        accum = (vgpr + 3) // 4 * 4
    nfv = vgpr if agpr == 0 else accum + agpr
    return ('.section .rodata,"a"\n.p2align 6\n.amdhsa_kernel %s\n'
            '  .amdhsa_next_free_vgpr %d\n  .amdhsa_next_free_sgpr %d\n  .amdhsa_accum_offset %d\n'
            '  .amdhsa_group_segment_fixed_size 0\n  .amdhsa_kernarg_size 80\n'
            '  .amdhsa_user_sgpr_count 2\n  .amdhsa_user_sgpr_kernarg_segment_ptr 1\n'
            '  .amdhsa_system_sgpr_workgroup_id_x 1\n.end_amdhsa_kernel\n.text\n' % (name, nfv, sgpr, accum))


def srd(a, d, base_lo, base_hi, nbytes):
    a("s_mov_b32 s%d, %s" % (d, base_lo))
    a("s_mov_b32 s%d, %s" % (d + 1, base_hi))
    a("s_mov_b32 s%d, 0x%x" % (d + 2, nbytes))
    a("s_mov_b32 s%d, 0x00020000" % (d + 3))
```

```python
from gen_common import *

NSLOT = 5
A_SLOT = 8192
W_BASE = NSLOT * A_SLOT
W_UNIT = NSLOT * 2048
LDS_K1 = W_BASE + 10 * W_UNIT
NSTAGE = 16
LA = 3
NB = 4

S_X, S_W, S_WS = 4, 8, 12
S_WAVE, S_RB, S_CG, S_ROT = 16, 17, 18, 19
S_XK0, S_XK1, S_WK, S_M0A, S_M0W, S_PST = 30, 31, 32, 33, 34, 35
S_UNIT = 36
S_T0, S_T1, S_T2, S_T3 = 46, 47, 48, 49
S_HM = 50
S_COL = 52
S_NP = 57
V_LANE = 1
V_A0, V_A1 = 2, 3
V_W = 4
V_XOFF = 14
V_WOFF = 15
V_L31 = 20
V_T = 21
V_AF = 64
V_WF = 72
V_RS, V_RQ = 88, 89
V_CS = 90
V_ACC = 96


def acc(j):
    return V_ACC + 16 * j


def variant(a, kind):
    ffn = kind == "ffn"
    U = 10 if ffn else 8
    nslots = 5 if ffn else 8
    ncs = 2
    pitch = 2752 if ffn else 3072
    rowlane = kind != "v"

    a.comment("==== K1 variant %s" % kind)
    a("s_lshr_b32 s%d, s%d, 1" % (S_T0, S_WAVE))
    a("s_and_b32 s%d, s%d, 1" % (S_T1, S_WAVE))
    if ffn:
        a("s_cmp_eq_u32 s%d, 0" % S_T1)
        a("s_cselect_b32 s%d, s24, s26" % S_W)
        a("s_cselect_b32 s%d, s25, s27" % (S_W + 1))
        a("s_mov_b32 s%d, 0x%x" % (S_W + 2, 512 * 1376 * 2))
        a("s_mov_b32 s%d, 0x00020000" % (S_W + 3))
        a("s_sub_u32 s%d, s%d, 6" % (S_T2, S_CG))
        a("s_mul_i32 s%d, s%d, 5" % (S_PST, S_T2))
        a("s_lshl_b32 s%d, s%d, 2" % (S_T3, S_T2))
        a("s_add_u32 s%d, s%d, 3" % (S_T3, S_T3))
        a("s_cmp_lt_u32 s%d, 3" % S_T2)
        a("s_cselect_b32 s%d, s%d, s%d" % (S_PST, S_PST, S_T3))
        a("s_mov_b32 s%d, s%d" % (S_ROT, S_WAVE))
        for j in range(5):
            a("s_add_u32 s%d, s%d, %d" % (S_COL + j, S_PST, j))
            a("s_min_u32 s%d, s%d, 42" % (S_COL + j, S_COL + j))
            a("s_lshl_b32 s%d, s%d, 6" % (S_COL + j, S_COL + j))
    else:
        srd(a, S_W, "s22", "s23", 512 * 1536 * 2)
        a("s_lshl_b32 s%d, s%d, 3" % (S_PST, S_CG))
        a("s_lshl_b32 s%d, s%d, 1" % (S_ROT, S_WAVE))
        for j in range(4):
            a("s_lshl_b32 s%d, s%d, 2" % (S_COL + j, S_T1))
            a("s_add_u32 s%d, s%d, s%d" % (S_COL + j, S_COL + j, S_PST))
            a("s_add_u32 s%d, s%d, %d" % (S_COL + j, S_COL + j, j))
            a("s_lshl_b32 s%d, s%d, 6" % (S_COL + j, S_COL + j))
    for j in range(nslots):
        a("s_add_u32 s%d, s%d, %d" % (S_UNIT + j, S_ROT, j))
        a("s_cmp_ge_u32 s%d, %d" % (S_UNIT + j, nslots))
        a("s_cselect_b32 s%d, %d, 0" % (S_T2, nslots))
        a("s_sub_u32 s%d, s%d, s%d" % (S_UNIT + j, S_UNIT + j, S_T2))
    a("s_lshl_b32 s%d, s%d, 17" % (S_XK0, S_RB))
    a("s_add_u32 s%d, s%d, 16384" % (S_XK1, S_XK0))
    a("s_mul_i32 s%d, s%d, %d" % (S_WK, S_T0, 16 * pitch))
    a("s_lshl_b32 s%d, s%d, 11" % (S_M0A, S_WAVE))
    a("s_mul_i32 s%d, s%d, %d" % (S_M0W, S_T1, (U // 2) * W_UNIT))
    a("s_lshl_b32 s%d, s%d, 10" % (S_T2, S_T0))
    a("s_add_u32 s%d, s%d, s%d" % (S_M0W, S_M0W, S_T2))
    a("s_add_u32 s%d, s%d, %d" % (S_M0W, S_M0W, W_BASE))
    a("v_lshrrev_b32 v%d, 2, v%d" % (V_T, V_LANE))
    a("v_lshlrev_b32 v%d, 10, v%d" % (V_T, V_T))
    a("s_lshl_b32 s%d, s%d, 15" % (S_T2, S_WAVE))
    a("v_add_u32 v%d, s%d, v%d" % (V_XOFF, S_T2, V_T))
    a("v_lshrrev_b32 v%d, 4, v%d" % (V_T, V_LANE))
    a("v_xor_b32 v%d, v%d, v%d" % (V_T, V_T, V_LANE))
    a("v_and_b32 v%d, 3, v%d" % (V_T, V_T))
    a("v_lshl_add_u32 v%d, v%d, 4, v%d" % (V_XOFF, V_T, V_XOFF))
    a("v_lshrrev_b32 v%d, 2, v%d" % (V_T, V_LANE))
    a("s_movk_i32 s%d, %d" % (S_T2, pitch))
    a("v_mul_lo_u32 v%d, v%d, s%d" % (V_T, V_T, S_T2))
    a("v_and_b32 v%d, 3, v%d" % (V_T + 1, V_LANE))
    a("v_lshl_add_u32 v%d, v%d, 4, v%d" % (V_T, V_T + 1, V_T))
    for j in range(U // 2):
        a("v_add_u32 v%d, s%d, v%d" % (V_WOFF + j, S_COL + j, V_T))
    a("v_lshrrev_b32 v%d, 5, v%d" % (V_T, V_LANE))
    a("v_bfe_u32 v%d, v%d, 2, 2" % (V_T + 1, V_LANE))
    a("v_lshlrev_b32 v%d, 6, v%d" % (V_T + 2, V_L31))
    a("s_lshl_b32 s%d, s%d, 11" % (S_T2, S_WAVE))
    a("v_add_u32 v%d, s%d, v%d" % (V_T + 2, S_T2, V_T + 2))
    for t in range(2):
        a("v_add_u32 v%d, %d, v%d" % (V_T + 3, 2 * t, V_T))
        a("v_xor_b32 v%d, v%d, v%d" % (V_T + 3, V_T + 3, V_T + 1))
        a("v_lshl_add_u32 v%d, v%d, 4, v%d" % (V_A0 + t, V_T + 3, V_T + 2))
    a("v_lshrrev_b32 v%d, 5, v%d" % (V_T, V_LANE))
    a("v_bfe_u32 v%d, v%d, 2, 2" % (V_T + 1, V_LANE))
    a("v_lshl_add_u32 v%d, v%d, 3, v%d" % (V_T, V_T, V_T + 1))
    a("v_lshlrev_b32 v%d, 6, v%d" % (V_T, V_T))
    a("v_bfe_u32 v%d, v%d, 4, 1" % (V_T + 1, V_LANE))
    a("v_lshl_add_u32 v%d, v%d, 5, v%d" % (V_T, V_T + 1, V_T))
    a("v_and_b32 v%d, 3, v%d" % (V_T + 1, V_LANE))
    a("v_lshl_add_u32 v%d, v%d, 3, v%d" % (V_T, V_T + 1, V_T))
    for j in range(nslots):
        a("s_mul_i32 s%d, s%d, %d" % (S_T2, S_UNIT + j, W_UNIT))
        a("s_add_u32 s%d, s%d, %d" % (S_T2, S_T2, W_BASE))
        a("v_add_u32 v%d, s%d, v%d" % (V_W + j, S_T2, V_T))
    a("v_mov_b32 v%d, 0" % V_RS)
    a("v_mov_b32 v%d, 0" % V_RQ)
    for c in range(4):
        a("v_mov_b32 v%d, 0" % (V_CS + c))
    a("s_mov_b32 s%d, 0x3f803f80" % S_T3)

    def dma_ops(s):
        slot = s % NSLOT
        ops = []
        for i in range(2):
            ops.append(["s_add_u32 m0, s%d, %d" % (S_M0A, slot * A_SLOT + 1024 * i),
                        "buffer_load_dwordx4 v%d, s[%d:%d], s%d offen lds" % (V_XOFF, S_X, S_X + 3, S_XK0 + i)])
        for j in range(U // 2):
            ops.append(["s_add_u32 m0, s%d, %d" % (S_M0W, j * W_UNIT + slot * 2048),
                        "buffer_load_dwordx4 v%d, s[%d:%d], s%d offen lds" % (V_WOFF + j, S_W, S_W + 3, S_WK)])
        ops.append(["s_add_u32 s%d, s%d, 64" % (S_XK0, S_XK0),
                    "s_add_u32 s%d, s%d, 64" % (S_XK1, S_XK1),
                    "s_add_u32 s%d, s%d, %d" % (S_WK, S_WK, 32 * pitch)])
        return ops

    def emit_dma(s):
        for grp in dma_ops(s):
            for ins in grp:
                a(ins, tag=("st", s) if ins.startswith("buffer") else None)

    for s in range(NSLOT - 2):
        emit_dma(s)

    seq = []
    for s in range(NSTAGE):
        for t in range(2):
            for j in range(nslots):
                for half in range(2 if ffn else 1):
                    seq.append((s, t, j, half))
    N = len(seq)

    def wbuf(g):
        return V_WF + 4 * (g % NB)

    def abuf(s, t):
        return V_AF + 4 * ((2 * s + t) % 2)

    fillers = []

    def emit_reads(g):
        s, t, j, half = seq[g]
        slot = s % NSLOT
        if t == 0 and j == 0 and half == 0:
            a.wait_tag(("st", s))
            a("s_barrier")
            ns = s + NSLOT - 2
            if ns < NSTAGE:
                fillers.extend(dma_ops(ns))
                filler_tag[0] = ("st", ns)
        if j == 0 and half == 0:
            a("ds_read_b128 v[%d:%d], v%d offset:%d" % (abuf(s, t), abuf(s, t) + 3, V_A0 + t, slot * A_SLOT))
        off = slot * 2048 + t * 1024 + half * 5 * W_UNIT
        b = wbuf(g)
        a("ds_read_b64_tr_b16 v[%d:%d], v%d offset:%d" % (b, b + 1, V_W + j, off))
        a("ds_read_b64_tr_b16 v[%d:%d], v%d offset:%d" % (b + 2, b + 3, V_W + j, off + 256))

    filler_tag = [None]

    def emit_filler():
        if fillers:
            grp = fillers.pop(0)
            for ins in grp:
                a(ins, tag=filler_tag[0] if ins.startswith("buffer") else None)

    for g in range(min(LA, N)):
        emit_reads(g)
    for g in range(N):
        if g + LA < N:
            emit_reads(g + LA)
        s, t, j, half = seq[g]
        tile = 2 * j + half if ffn else j
        b = wbuf(g)
        ab = abuf(s, t)
        cop = "0" if (s == 0 and t == 0) else "v[%d:%d]" % (acc(tile), acc(tile) + 15)
        if rowlane:
            a("v_mfma_f32_32x32x16_bf16 v[%d:%d], v[%d:%d], v[%d:%d], %s" % (acc(tile), acc(tile) + 15, b, b + 3, ab, ab + 3, cop))
        else:
            a("v_mfma_f32_32x32x16_bf16 v[%d:%d], v[%d:%d], v[%d:%d], %s" % (acc(tile), acc(tile) + 15, ab, ab + 3, b, b + 3, cop))
        if j == 0 and half == 0:
            for r in range(4):
                a("v_dot2_f32_bf16 v%d, v%d, s%d, v%d" % (V_RS, ab + r, S_T3, V_RS))
                a("v_dot2_f32_bf16 v%d, v%d, v%d, v%d" % (V_RQ, ab + r, ab + r, V_RQ))
        if j < ncs:
            c = V_CS + (2 * j + half if ffn else j)
            for r in range(4):
                a("v_dot2_f32_bf16 v%d, v%d, s%d, v%d" % (c, b + r, S_T3, c))
        emit_filler()
    while fillers:
        emit_filler()

    T0, T1 = V_T, V_T + 1
    def half_sum(v):
        a("v_mov_b32 v%d, v%d" % (T0, v))
        a("v_mov_b32 v%d, v%d" % (T1, v))
        a("v_permlane32_swap_b32 v%d, v%d" % (T0, T1))
        a("v_add_f32 v%d, v%d, v%d" % (v, T0, T1))
    half_sum(V_RS)
    half_sum(V_RQ)
    ncsu = 4 if ffn else 2
    for c in range(ncsu):
        half_sum(V_CS + c)
    V_MEAN, V_VE, V_RSTD = V_T + 2, V_T + 3, V_T + 4
    a("v_mul_f32 v%d, 0x3b000000, v%d" % (V_MEAN, V_RS))
    a("v_mul_f32 v%d, 0x3b000000, v%d" % (V_VE, V_RQ))
    a("v_fma_f32 v%d, -v%d, v%d, v%d" % (V_VE, V_MEAN, V_MEAN, V_VE))
    a("v_add_f32 v%d, 0x3727c5ac, v%d" % (V_VE, V_VE))
    a("v_rsq_f32 v%d, v%d" % (V_RSTD, V_VE))
    a("s_waitcnt lgkmcnt(0)")
    a("s_barrier")
    a("v_lshlrev_b32 v%d, 2, v%d" % (T0, V_L31))
    for c in range(ncsu):
        j, half = (c // 2, c % 2) if ffn else (c, 0)
        a("s_lshl_b32 s%d, s%d, 7" % (S_T2, S_UNIT + j))
        if half:
            a("s_add_u32 s%d, s%d, %d" % (S_T2, S_T2, 5 * 128))
        a("v_add_u32 v%d, s%d, v%d" % (T1, S_T2, T0))
        a("ds_write_b32 v%d, v%d" % (T1, V_CS + c))
    a("s_waitcnt lgkmcnt(0)")
    a("s_barrier")
    ntiles = 10 if ffn else 8
    V_CT = 32
    for tile in range(ntiles):
        j, half = (tile // 2, tile % 2) if ffn else (tile, 0)
        a("s_lshl_b32 s%d, s%d, 7" % (S_T2, S_UNIT + j))
        if half:
            a("s_add_u32 s%d, s%d, %d" % (S_T2, S_T2, 5 * 128))
        a("v_add_u32 v%d, s%d, v%d" % (T1, S_T2, T0))
        a("ds_read_b32 v%d, v%d" % (V_CT + tile, T1))
    XQ, CQ = 44, 48
    a("v_mov_b32 v%d, 0" % (XQ + 2)); a("v_mov_b32 v%d, 0" % (XQ + 3))
    a("v_mov_b32 v%d, 0" % (CQ + 2)); a("v_mov_b32 v%d, 0" % (CQ + 3))
    a("v_sub_f32 v%d, 0, v%d" % (T0, V_MEAN))
    a("v_cndmask_b32 v%d, v%d, 0, s[%d:%d]" % (T0, T0, S_HM, S_HM + 1))
    a("v_cvt_pk_bf16_f32 v%d, v%d, v%d" % (XQ, T0, T0))
    a("v_lshlrev_b32 v%d, 16, v%d" % (T1, XQ))
    a("v_sub_f32 v%d, v%d, v%d" % (T1, T0, T1))
    a("v_cvt_pk_bf16_f32 v%d, v%d, v%d" % (XQ, T0, T1))
    a("v_mov_b32 v%d, v%d" % (XQ + 1, XQ))
    for tile in range(ntiles):
        a("v_cndmask_b32 v%d, v%d, 0, s[%d:%d]" % (T0, V_CT + tile, S_HM, S_HM + 1))
        a("v_cvt_pk_bf16_f32 v%d, v%d, v%d" % (CQ, T0, T0))
        a("v_lshlrev_b32 v%d, 16, v%d" % (T1, CQ))
        a("v_sub_f32 v%d, v%d, v%d" % (T1, T0, T1))
        a("v_cvt_pk_bf16_f32 v%d, v%d, v%d" % (CQ + 1, T1, T1))
        if rowlane:
            a("v_mfma_f32_32x32x16_bf16 v[%d:%d], v[%d:%d], v[%d:%d], v[%d:%d]" % (acc(tile), acc(tile) + 15, CQ, CQ + 3, XQ, XQ + 3, acc(tile), acc(tile) + 15))
        else:
            a("v_mfma_f32_32x32x16_bf16 v[%d:%d], v[%d:%d], v[%d:%d], v[%d:%d]" % (acc(tile), acc(tile) + 15, XQ, XQ + 3, CQ, CQ + 3, acc(tile), acc(tile) + 15))

    V_VOFF = V_T + 5
    V_RP = 52
    if kind == "qk":
        a("v_mov_b32 v%d, v%d" % (V_RP, V_RSTD)); a("v_mov_b32 v%d, v%d" % (V_RP + 1, V_RSTD))
        a("v_lshlrev_b32 v%d, 5, v%d" % (V_VOFF, V_L31))
        a("v_lshrrev_b32 v%d, 5, v%d" % (T0, V_LANE))
        a("v_lshl_add_u32 v%d, v%d, 4, v%d" % (V_VOFF, T0, V_VOFF))
        a("s_lshl_b32 s%d, s%d, 10" % (S_T2, S_WAVE))
        a("v_add_u32 v%d, s%d, v%d" % (V_VOFF, S_T2, V_VOFF))
        a("s_lshl_b32 s%d, s%d, 12" % (S_T0, S_RB))
        a("s_cmp_ge_u32 s%d, 2" % S_CG)
        a("s_cselect_b32 s%d, 0x%x, 0x%x" % (S_T1, KF_OFF, QF_OFF))
        a("s_add_u32 s%d, s%d, s%d" % (S_T0, S_T0, S_T1))
        a("s_and_b32 s%d, s%d, 1" % (S_T1, S_CG))
        a("s_lshl_b32 s%d, s%d, 20" % (S_T1, S_T1))
        a("s_add_u32 s%d, s%d, s%d" % (S_T0, S_T0, S_T1))
        for j in range(8):
            A0 = acc(j)
            tb = 56 if j % 2 == 0 else 32
            for i in range(0, 16, 2):
                a("v_pk_mul_f32 v[%d:%d], v[%d:%d], v[%d:%d]" % (A0 + i, A0 + i + 1, A0 + i, A0 + i + 1, V_RP, V_RP + 1))
            for i in range(0, 16, 2):
                a("v_cvt_pk_bf16_f32 v%d, v%d, v%d" % (tb + i // 2, A0 + i, A0 + i + 1))
            a("s_lshl_b32 s%d, s%d, 17" % (S_T2, S_UNIT + j))
            a("s_add_u32 s%d, s%d, s%d" % (S_T2, S_T2, S_T0))
            a("s_add_u32 s%d, s%d, 65536" % (S_T3, S_T2))
            a("buffer_store_dwordx4 v[%d:%d], v%d, s[%d:%d], s%d offen" % (tb, tb + 3, V_VOFF, S_WS, S_WS + 3, S_T2))
            a("buffer_store_dwordx4 v[%d:%d], v%d, s[%d:%d], s%d offen" % (tb + 4, tb + 7, V_VOFF, S_WS, S_WS + 3, S_T3))
    elif kind == "v":
        TT = 32
        a("v_lshrrev_b32 v%d, 5, v%d" % (T0, V_LANE))
        a("v_lshlrev_b32 v%d, 4, v%d" % (T0, T0))
        for i in range(16):
            a("v_add_u32 v%d, %d, v%d" % (T1, 4 * (8 * (i >> 2) + (i & 3)), T0))
            a("ds_bpermute_b32 v%d, v%d, v%d" % (TT + i, T1, V_RSTD))
        a("v_lshrrev_b32 v%d, 4, v%d" % (V_VOFF, V_L31))
        a("v_lshlrev_b32 v%d, 16, v%d" % (V_VOFF, V_VOFF))
        a("v_and_b32 v%d, 15, v%d" % (T1, V_L31))
        a("v_lshl_add_u32 v%d, v%d, 5, v%d" % (V_VOFF, T1, V_VOFF))
        a("v_add_u32 v%d, v%d, v%d" % (V_VOFF, T0, V_VOFF))
        a("s_lshl_b32 s%d, s%d, 3" % (S_T0, S_RB))
        a("s_lshl_b32 s%d, s%d, 1" % (S_T1, S_WAVE))
        a("s_add_u32 s%d, s%d, s%d" % (S_T0, S_T0, S_T1))
        a("s_lshl_b32 s%d, s%d, 9" % (S_T0, S_T0))
        a("s_add_u32 s%d, s%d, 0x%x" % (S_T0, S_T0, VF_OFF))
        a("s_and_b32 s%d, s%d, 1" % (S_T1, S_CG))
        a("s_lshl_b32 s%d, s%d, 20" % (S_T1, S_T1))
        a("s_add_u32 s%d, s%d, s%d" % (S_T0, S_T0, S_T1))
        for j in range(8):
            A0 = acc(j)
            tb = 56 if j % 2 == 0 else 48
            for i in range(0, 16, 2):
                a("v_pk_mul_f32 v[%d:%d], v[%d:%d], v[%d:%d]" % (A0 + i, A0 + i + 1, A0 + i, A0 + i + 1, TT + i, TT + i + 1))
            for i in range(0, 16, 2):
                a("v_cvt_pk_bf16_f32 v%d, v%d, v%d" % (tb + i // 2, A0 + i, A0 + i + 1))
            a("s_lshl_b32 s%d, s%d, 17" % (S_T2, S_UNIT + j))
            a("s_add_u32 s%d, s%d, s%d" % (S_T2, S_T2, S_T0))
            a("s_add_u32 s%d, s%d, 512" % (S_T3, S_T2))
            a("buffer_store_dwordx4 v[%d:%d], v%d, s[%d:%d], s%d offen" % (tb, tb + 3, V_VOFF, S_WS, S_WS + 3, S_T2))
            a("buffer_store_dwordx4 v[%d:%d], v%d, s[%d:%d], s%d offen" % (tb + 4, tb + 7, V_VOFF, S_WS, S_WS + 3, S_T3))
    else:
        C1, IC2 = 52, 54
        a("v_mul_f32 v%d, 0xbfb8aa3b, v%d" % (C1, V_RSTD))
        a("v_mov_b32 v%d, v%d" % (C1 + 1, C1))
        a("v_mov_b32 v%d, v%d" % (IC2, V_VE)); a("v_mov_b32 v%d, v%d" % (IC2 + 1, V_VE))
        a("s_movk_i32 s%d, 2752" % S_T2)
        a("v_mul_lo_u32 v%d, v%d, s%d" % (V_VOFF, V_L31, S_T2))
        a("v_lshrrev_b32 v%d, 5, v%d" % (T0, V_LANE))
        a("v_lshl_add_u32 v%d, v%d, 4, v%d" % (V_VOFF, T0, V_VOFF))
        a("s_mul_i32 s%d, s%d, %d" % (S_T2, S_WAVE, 32 * 2752))
        a("v_add_u32 v%d, s%d, v%d" % (V_VOFF, S_T2, V_VOFF))
        a("s_mul_i32 s%d, s%d, %d" % (S_T0, S_RB, 128 * 2752))
        a("s_add_u32 s%d, s%d, 0x%x" % (S_T0, S_T0, H_OFF))
        for jp in range(5):
            G, Uu = acc(2 * jp), acc(2 * jp + 1)
            a("s_add_u32 s%d, s%d, s%d" % (S_T1, S_PST, S_UNIT + jp))
            a("s_cmp_gt_u32 s%d, 42" % S_T1)
            a("s_cbranch_scc1 L_k1f_skip%d" % jp)
            tb = 56
            TP = 32
            for i in range(0, 16, 2):
                tp = TP + (i % 16)
                a("v_pk_mul_f32 v[%d:%d], v[%d:%d], v[%d:%d]" % (tp, tp + 1, G + i, G + i + 1, C1, C1 + 1))
                a("v_exp_f32 v%d, v%d" % (tp, tp))
                a("v_exp_f32 v%d, v%d" % (tp + 1, tp + 1))
                a("v_pk_mul_f32 v[%d:%d], v[%d:%d], v[%d:%d]" % (G + i, G + i + 1, G + i, G + i + 1, Uu + i, Uu + i + 1))
                a("v_pk_fma_f32 v[%d:%d], v[%d:%d], v[%d:%d], v[%d:%d]" % (tp, tp + 1, tp, tp + 1, IC2, IC2 + 1, IC2, IC2 + 1))
                a("v_rcp_f32 v%d, v%d" % (tp, tp))
                a("v_rcp_f32 v%d, v%d" % (tp + 1, tp + 1))
            for i in range(0, 16, 2):
                tp = TP + (i % 16)
                a("v_pk_mul_f32 v[%d:%d], v[%d:%d], v[%d:%d]" % (G + i, G + i + 1, G + i, G + i + 1, tp, tp + 1))
                a("v_cvt_pk_bf16_f32 v%d, v%d, v%d" % (tb + i // 2, G + i, G + i + 1))
            a("v_permlane32_swap_b32 v%d, v%d" % (tb + 0, tb + 2))
            a("v_permlane32_swap_b32 v%d, v%d" % (tb + 1, tb + 3))
            a("v_permlane32_swap_b32 v%d, v%d" % (tb + 4, tb + 6))
            a("v_permlane32_swap_b32 v%d, v%d" % (tb + 5, tb + 7))
            a("s_lshl_b32 s%d, s%d, 6" % (S_T1, S_T1))
            a("s_add_u32 s%d, s%d, s%d" % (S_T1, S_T1, S_T0))
            a("buffer_store_dwordx4 v[%d:%d], v%d, s[%d:%d], s%d offen" % (tb, tb + 3, V_VOFF, S_WS, S_WS + 3, S_T1))
            a("buffer_store_dwordx4 v[%d:%d], v%d, s[%d:%d], s%d offen offset:32" % (tb + 4, tb + 7, V_VOFF, S_WS, S_WS + 3, S_T1))
            a.label("L_k1f_skip%d" % jp)
    a("s_endpgm")


def gen_k1(name="k1_gemm_kernel"):
    a = Asm()
    a("s_cmp_ge_u32 s2, 256")
    a("s_cbranch_scc1 L_k1_exit")
    a("s_load_dwordx2 s[20:21], s[0:1], 0")
    a("s_load_dwordx2 s[22:23], s[0:1], 8")
    a("s_load_dwordx2 s[24:25], s[0:1], 32")
    a("s_load_dwordx2 s[26:27], s[0:1], 40")
    a("s_load_dwordx2 s[28:29], s[0:1], 72")
    a("v_and_b32 v%d, 63, v0" % V_LANE)
    a("v_and_b32 v%d, 31, v0" % V_L31)
    a("v_lshrrev_b32 v%d, 6, v0" % V_T)
    a("v_readfirstlane_b32 s%d, v%d" % (S_WAVE, V_T))
    a("s_lshr_b32 s%d, s2, 4" % S_RB)
    a("s_and_b32 s%d, s2, 15" % S_CG)
    a("s_mov_b32 s%d, 0" % S_HM)
    a("s_mov_b32 s%d, -1" % (S_HM + 1))
    a("s_waitcnt lgkmcnt(0)")
    srd(a, S_X, "s20", "s21", S * D * 2)
    srd(a, S_WS, "s28", "s29", WS_BYTES)
    a("s_cmp_ge_u32 s%d, 6" % S_CG)
    a("s_cbranch_scc1 L_k1_ffn")
    a("s_cmp_ge_u32 s%d, 4" % S_CG)
    a("s_cbranch_scc1 L_k1_v")
    variant(a, "qk")
    a.label("L_k1_v")
    variant(a, "v")
    a.label("L_k1_ffn")
    variant(a, "ffn")
    a.label("L_k1_exit")
    a("s_endpgm")
    txt = kernel_header(name) + a.text() + kernel_desc(name, 256, 64)
    return txt, a.stats


if __name__ == "__main__":
    t, st = gen_k1()
    print(st, len(t))
```

```python
from gen_common import *

S_WS = 4
S_WAVE, S_HEAD, S_QB = 8, 9, 10
S_T0, S_T1, S_T2, S_T3 = 11, 12, 13, 14
S_C = 15
S_VEX = 16
S_INV0 = 18
S_VM = 20
S_M = 34
S_INV = 66
V_LANE, V_L31, V_HF = 1, 2, 3
V_T0, V_T1, V_T2 = 4, 5, 6
V_NINF = 7
V_Q = 8
V_K = 12
V_V = 48
V_O = 72
V_MD = 88
V_M, V_NEGMC, V_B = 96, 97, 98
V_KOFF, V_VOFF = 99, 100
V_TM = 101
V_S = 112
NVB = 6


def st(j):
    return V_S + 16 * j


def gen_k2(name="k2_attn_kernel"):
    a = Asm()
    a("s_cmp_ge_u32 s2, 512")
    a("s_cbranch_scc1 L_k2_exit")
    a("s_load_dwordx2 s[28:29], s[0:1], 72")
    a("v_and_b32 v%d, 63, v0" % V_LANE)
    a("v_and_b32 v%d, 31, v0" % V_L31)
    a("v_bfe_u32 v%d, v0, 5, 1" % V_HF)
    a("v_lshrrev_b32 v%d, 6, v0" % V_T0)
    a("v_readfirstlane_b32 s%d, v%d" % (S_WAVE, V_T0))
    a("s_and_b32 s%d, s2, 7" % S_T0)
    a("s_lshl_b32 s%d, s%d, 2" % (S_T0, S_T0))
    a("s_add_u32 s%d, s%d, s%d" % (S_HEAD, S_T0, S_WAVE))
    a("s_lshr_b32 s%d, s2, 3" % S_QB)
    a("s_mov_b32 s%d, 0x3eb8aa3b" % S_C)
    a("s_mov_b32 s%d, 0x0000ffff" % S_VEX)
    a("s_mov_b32 s%d, 0x0000ffff" % (S_VEX + 1))
    a("v_mov_b32 v%d, 0xff800000" % V_NINF)
    a("s_waitcnt lgkmcnt(0)")
    srd(a, S_WS, "s28", "s29", WS_BYTES)
    a("v_lshlrev_b32 v%d, 5, v%d" % (V_KOFF, V_L31))
    a("v_lshl_add_u32 v%d, v%d, 4, v%d" % (V_KOFF, V_HF, V_KOFF))
    a("s_lshl_b32 s%d, s%d, 16" % (S_T0, S_HEAD))
    a("s_lshl_b32 s%d, s%d, 10" % (S_T1, S_QB))
    a("s_add_u32 s%d, s%d, s%d" % (S_T1, S_T1, S_T0))
    a("buffer_load_dwordx4 v[%d:%d], v%d, s[%d:%d], s%d offen" % (V_Q, V_Q + 3, V_KOFF, S_WS, S_WS + 3, S_T1))
    a("s_add_u32 s%d, s%d, 0x%x" % (S_T0, S_T0, KF_OFF))
    for j in range(9):
        a("s_add_i32 s%d, s%d, %d" % (S_T2, S_QB, j - 8))
        a("s_max_i32 s%d, s%d, 0" % (S_T2, S_T2))
        a("s_lshl_b32 s%d, s%d, 10" % (S_T2, S_T2))
        a("s_add_u32 s%d, s%d, s%d" % (S_T2, S_T2, S_T0))
        a("buffer_load_dwordx4 v[%d:%d], v%d, s[%d:%d], s%d offen" % (V_K + 4 * j, V_K + 4 * j + 3, V_KOFF, S_WS, S_WS + 3, S_T2))
    a("v_cmp_eq_u32 vcc, 16, v%d" % V_L31)
    a("v_cmp_eq_u32 s[%d:%d], 20, v%d" % (S_INV0, S_INV0 + 1, V_L31))
    a("s_or_b64 vcc, vcc, s[%d:%d]" % (S_INV0, S_INV0 + 1))
    a("v_mov_b32 v%d, 0x3f803f80" % V_T1)
    a("v_cndmask_b32 v%d, 0, v%d, vcc" % (V_T0, V_T1))
    for r in range(4 * NVB):
        a("v_mov_b32 v%d, v%d" % (V_V + r, V_T0))
    a("v_and_b32 v%d, 15, v%d" % (V_T0, V_LANE))
    a("v_lshlrev_b32 v%d, 5, v%d" % (V_VOFF, V_T0))
    a("v_lshl_add_u32 v%d, v%d, 4, v%d" % (V_VOFF, V_HF, V_VOFF))
    order = [(j, t) for j in range(1, 8) for t in range(2)] + [(8, 0), (8, 1), (0, 0), (0, 1)]

    def vload(f):
        j, t = order[f]
        b = V_V + 4 * (f % NVB)
        a("s_add_i32 s%d, s%d, %d" % (S_T2, S_QB, j - 8))
        a("s_max_i32 s%d, s%d, 0" % (S_T2, S_T2))
        a("s_lshl_b32 s%d, s%d, 10" % (S_T2, S_T2))
        a("s_lshl_b32 s%d, s%d, 16" % (S_T3, S_HEAD))
        a("s_add_u32 s%d, s%d, s%d" % (S_T2, S_T2, S_T3))
        a("s_add_u32 s%d, s%d, 0x%x" % (S_T2, S_T2, VF_OFF + 512 * t))
        a("s_mov_b64 exec, s[%d:%d]" % (S_VEX, S_VEX + 1))
        a("buffer_load_dwordx4 v[%d:%d], v%d, s[%d:%d], s%d offen" % (b, b + 3, V_VOFF, S_WS, S_WS + 3, S_T2))
        a("s_mov_b64 exec, -1")

    for f in range(NVB):
        vload(f)
    for i in range(16):
        a("v_lshl_add_u32 v%d, v%d, 2, %d" % (V_T0, V_HF, 8 * (i >> 2) + (i & 3)))
        a("v_cmp_le_u32 s[%d:%d], v%d, v%d" % (S_M + 2 * i, S_M + 2 * i + 1, V_T0, V_L31))
    a("s_cmp_lt_u32 s%d, 8" % S_QB)
    a("s_cselect_b64 s[%d:%d], -1, 0" % (S_INV0, S_INV0 + 1))
    for i in range(16):
        a("s_andn2_b64 s[%d:%d], s[%d:%d], s[%d:%d]" % (S_INV + 2 * i, S_INV + 2 * i + 1, S_INV0, S_INV0 + 1, S_M + 2 * i, S_M + 2 * i + 1))
    for j in range(1, 8):
        a("s_cmp_ge_u32 s%d, %d" % (S_QB, 8 - j))
        a("s_cselect_b64 s[%d:%d], -1, 0" % (S_VM + 2 * (j - 1), S_VM + 2 * (j - 1) + 1))
    a("v_mov_b32 v%d, 0xffff" % V_T1)
    a("v_mov_b32 v%d, 0xffff0000" % V_T2)
    for k in range(8):
        a("v_cndmask_b32 v%d, 0, v%d, s[%d:%d]" % (V_T0, V_T1, S_M + 4 * k, S_M + 4 * k + 1))
        a("v_cndmask_b32 v%d, 0, v%d, s[%d:%d]" % (V_MD + k, V_T2, S_M + 4 * k + 2, S_M + 4 * k + 3))
        a("v_or_b32 v%d, v%d, v%d" % (V_MD + k, V_MD + k, V_T0))
    for j in range(9):
        a("v_mfma_f32_32x32x16_bf16 v[%d:%d], v[%d:%d], v[%d:%d], 0" % (st(j), st(j) + 15, V_K + 4 * j, V_K + 4 * j + 3, V_Q, V_Q + 3))
    for i in range(16):
        a("v_cndmask_b32 v%d, v%d, v%d, s[%d:%d]" % (st(8) + i, st(0) + i, st(8) + i, S_M + 2 * i, S_M + 2 * i + 1))
    for i in range(16):
        a("v_cndmask_b32 v%d, v%d, v%d, s[%d:%d]" % (st(8) + i, st(8) + i, V_NINF, S_INV + 2 * i, S_INV + 2 * i + 1))
    def tile_max(j, dst):
        b = st(j)
        a("v_max3_f32 v%d, v%d, v%d, v%d" % (dst, b, b + 1, b + 2))
        for i in range(3, 15, 2):
            a("v_max3_f32 v%d, v%d, v%d, v%d" % (dst, dst, b + i, b + i + 1))
        a("v_max_f32 v%d, v%d, v%d" % (dst, dst, b + 15))
    tile_max(8, V_M)
    for j in range(1, 8):
        tile_max(j, V_TM)
        a("v_cndmask_b32 v%d, v%d, v%d, s[%d:%d]" % (V_TM, V_NINF, V_TM, S_VM + 2 * (j - 1), S_VM + 2 * (j - 1) + 1))
        a("v_max_f32 v%d, v%d, v%d" % (V_M, V_M, V_TM))
    a("v_mov_b32 v%d, v%d" % (V_T0, V_M))
    a("v_mov_b32 v%d, v%d" % (V_T1, V_M))
    a("v_permlane32_swap_b32 v%d, v%d" % (V_T0, V_T1))
    a("v_max_f32 v%d, v%d, v%d" % (V_M, V_T0, V_T1))
    a("v_mul_f32 v%d, s%d, v%d" % (V_NEGMC, S_C, V_M))
    a("v_sub_f32 v%d, 0, v%d" % (V_NEGMC, V_NEGMC))
    nmf = [0]

    def pv(f, pbase):
        b = V_V + 4 * (f % NVB)
        cop = "0" if nmf[0] == 0 else "v[%d:%d]" % (V_O, V_O + 15)
        a("v_mfma_f32_32x32x16_bf16 v[%d:%d], v[%d:%d], v[%d:%d], %s" % (V_O, V_O + 15, b, b + 3, pbase, pbase + 3, cop))
        nmf[0] += 1
        if f + NVB < len(order):
            vload(f + NVB)

    def exp_tile(j, bias):
        b = st(j)
        for i in range(16):
            a("v_fma_f32 v%d, v%d, s%d, v%d" % (b + i, b + i, S_C, bias))
        for i in range(16):
            a("v_exp_f32 v%d, v%d" % (b + i, b + i))
        for k in range(8):
            a("v_cvt_pk_bf16_f32 v%d, v%d, v%d" % (b + k, b + 2 * k, b + 2 * k + 1))

    f = 0
    for j in range(1, 8):
        a("v_cndmask_b32 v%d, v%d, v%d, s[%d:%d]" % (V_B, V_NINF, V_NEGMC, S_VM + 2 * (j - 1), S_VM + 2 * (j - 1) + 1))
        exp_tile(j, V_B)
        pv(f, st(j)); f += 1
        pv(f, st(j) + 4); f += 1
    exp_tile(8, V_NEGMC)
    for k in range(8):
        a("v_and_b32 v%d, v%d, v%d" % (st(0) + k, st(8) + k, V_MD + k))
        a("v_xor_b32 v%d, v%d, v%d" % (st(0) + 8 + k, st(8) + k, st(0) + k))
    pv(f, st(0)); f += 1
    pv(f, st(0) + 4); f += 1
    pv(f, st(0) + 8); f += 1
    pv(f, st(0) + 12); f += 1
    a("v_rcp_f32 v%d, v%d" % (V_T0, V_O + 8))
    for i in range(8):
        a("v_mul_f32 v%d, v%d, v%d" % (V_O + i, V_O + i, V_T0))
    for k in range(4):
        a("v_cvt_pk_bf16_f32 v%d, v%d, v%d" % (V_K + k, V_O + 2 * k, V_O + 2 * k + 1))
    a("v_permlane32_swap_b32 v%d, v%d" % (V_K + 0, V_K + 2))
    a("v_permlane32_swap_b32 v%d, v%d" % (V_K + 1, V_K + 3))
    a("v_lshlrev_b32 v%d, 10, v%d" % (V_T1, V_L31))
    a("v_lshl_add_u32 v%d, v%d, 4, v%d" % (V_T1, V_HF, V_T1))
    a("s_lshl_b32 s%d, s%d, 15" % (S_T0, S_QB))
    a("s_lshl_b32 s%d, s%d, 5" % (S_T1, S_HEAD))
    a("s_add_u32 s%d, s%d, s%d" % (S_T0, S_T0, S_T1))
    a("s_add_u32 s%d, s%d, 0x%x" % (S_T0, S_T0, O_OFF))
    a("buffer_store_dwordx4 v[%d:%d], v%d, s[%d:%d], s%d offen" % (V_K, V_K + 3, V_T1, S_WS, S_WS + 3, S_T0))
    a.label("L_k2_exit")
    a("s_endpgm")
    txt = kernel_header(name) + a.text() + kernel_desc(name, 256, 102)
    return txt, a.stats


if __name__ == "__main__":
    t, st_ = gen_k2()
    print(st_, len(t))
```

```python
from gen_common import *

NSLOT3 = 16
W3_BASE = NSLOT3 * 4096
LDS_K3 = 2 * NSLOT3 * 4096
NST1, NST2 = 16, 43
LA3 = 2

S_WS, S_WO, S_W2, S_XS, S_OUT = 4, 8, 12, 16, 20
S_WAVE, S_RB, S_CB = 24, 25, 26
S_AK, S_WK, S_M0A, S_M0W = 27, 30, 31, 32
S_T0, S_T1, S_T2 = 33, 34, 35
V_LANE, V_L31, V_HF = 1, 2, 3
V_T0, V_T1, V_T2 = 4, 5, 6
V_AOFF1, V_AOFF2, V_WOFF = 7, 8, 9
V_A0, V_A1, V_WR = 10, 11, 12
V_XO = 13
V_X = 16
V_AS, V_AG = 32, 48
V_AF = 64
V_WF = 76
V_TP = 88


def gen_k3(name="k3_out_kernel"):
    a = Asm()
    a("s_cmp_ge_u32 s2, 256")
    a("s_cbranch_scc1 L_k3_exit")
    a("s_load_dwordx2 s[40:41], s[0:1], 0")
    a("s_load_dwordx2 s[42:43], s[0:1], 16")
    a("s_load_dwordx2 s[44:45], s[0:1], 48")
    a("s_load_dwordx2 s[46:47], s[0:1], 56")
    a("s_load_dwordx2 s[48:49], s[0:1], 72")
    a("v_and_b32 v%d, 63, v0" % V_LANE)
    a("v_and_b32 v%d, 31, v0" % V_L31)
    a("v_bfe_u32 v%d, v0, 5, 1" % V_HF)
    a("v_lshrrev_b32 v%d, 6, v0" % V_T0)
    a("v_readfirstlane_b32 s%d, v%d" % (S_WAVE, V_T0))
    a("s_and_b32 s%d, s2, 7" % S_T0)
    a("s_lshl_b32 s%d, s%d, 2" % (S_T0, S_T0))
    a("s_bfe_u32 s%d, s2, 0x20003" % S_T1)
    a("s_add_u32 s%d, s%d, s%d" % (S_RB, S_T0, S_T1))
    a("s_lshr_b32 s%d, s2, 5" % S_CB)
    a("s_waitcnt lgkmcnt(0)")
    srd(a, S_WS, "s48", "s49", WS_BYTES)
    srd(a, S_WO, "s42", "s43", 512 * 512 * 2)
    srd(a, S_W2, "s44", "s45", F * 512 * 2)
    srd(a, S_XS, "s40", "s41", S * D * 2)
    srd(a, S_OUT, "s46", "s47", S * D * 2)
    a("s_lshr_b32 s%d, s%d, 1" % (S_T0, S_WAVE))
    a("s_and_b32 s%d, s%d, 1" % (S_T1, S_WAVE))
    a("v_lshlrev_b32 v%d, 10, v%d" % (V_XO, V_L31))
    a("v_lshl_add_u32 v%d, v%d, 3, v%d" % (V_XO, V_HF, V_XO))
    a("s_lshl_b32 s%d, s%d, 16" % (S_T2, S_RB))
    a("s_lshl_b32 s%d, s%d, 15" % (S_AK, S_T0))
    a("s_add_u32 s%d, s%d, s%d" % (S_T2, S_T2, S_AK))
    a("s_lshl_b32 s%d, s%d, 7" % (S_AK, S_CB))
    a("s_add_u32 s%d, s%d, s%d" % (S_T2, S_T2, S_AK))
    a("s_lshl_b32 s%d, s%d, 6" % (S_AK, S_T1))
    a("s_add_u32 s%d, s%d, s%d" % (S_T2, S_T2, S_AK))
    a("v_add_u32 v%d, s%d, v%d" % (V_XO, S_T2, V_XO))
    for q in range(4):
        a("buffer_load_dwordx2 v[%d:%d], v%d, s[%d:%d], 0 offen offset:%d" % (V_X + 2 * q, V_X + 2 * q + 1, V_XO, S_XS, S_XS + 3, 16 * q))
    a("v_lshrrev_b32 v%d, 2, v%d" % (V_T0, V_LANE))
    a("s_lshl_b32 s%d, s%d, 4" % (S_T2, S_WAVE))
    a("v_add_u32 v%d, s%d, v%d" % (V_T0, S_T2, V_T0))
    a("v_lshrrev_b32 v%d, 4, v%d" % (V_T1, V_LANE))
    a("v_xor_b32 v%d, v%d, v%d" % (V_T1, V_T1, V_LANE))
    a("v_and_b32 v%d, 3, v%d" % (V_T1, V_T1))
    a("v_lshlrev_b32 v%d, 4, v%d" % (V_T1, V_T1))
    a("v_lshl_add_u32 v%d, v%d, 10, v%d" % (V_AOFF1, V_T0, V_T1))
    a("s_movk_i32 s%d, 2752" % S_T2)
    a("v_mul_lo_u32 v%d, v%d, s%d" % (V_AOFF2, V_T0, S_T2))
    a("v_add_u32 v%d, v%d, v%d" % (V_AOFF2, V_AOFF2, V_T1))
    a("v_lshrrev_b32 v%d, 2, v%d" % (V_T0, V_LANE))
    a("v_and_b32 v%d, 3, v%d" % (V_T1, V_LANE))
    a("v_lshlrev_b32 v%d, 4, v%d" % (V_T1, V_T1))
    a("v_lshl_add_u32 v%d, v%d, 10, v%d" % (V_WOFF, V_T0, V_T1))
    a("s_lshl_b32 s%d, s%d, 7" % (S_T2, S_CB))
    a("s_lshl_b32 s%d, s%d, 6" % (S_AK, S_T1))
    a("s_add_u32 s%d, s%d, s%d" % (S_T2, S_T2, S_AK))
    a("v_add_u32 v%d, s%d, v%d" % (V_WOFF, S_T2, V_WOFF))
    a("s_lshl_b32 s%d, s%d, 10" % (S_M0A, S_WAVE))
    a("s_lshl_b32 s%d, s%d, 11" % (S_M0W, S_T0))
    a("s_lshl_b32 s%d, s%d, 10" % (S_T2, S_T1))
    a("s_add_u32 s%d, s%d, s%d" % (S_M0W, S_M0W, S_T2))
    a("s_add_u32 s%d, s%d, %d" % (S_M0W, S_M0W, W3_BASE))
    a("v_bfe_u32 v%d, v%d, 2, 2" % (V_T1, V_LANE))
    a("v_lshlrev_b32 v%d, 6, v%d" % (V_T2, V_L31))
    a("s_lshl_b32 s%d, s%d, 11" % (S_T2, S_T0))
    a("v_add_u32 v%d, s%d, v%d" % (V_T2, S_T2, V_T2))
    for t in range(2):
        a("v_add_u32 v%d, %d, v%d" % (V_T0, 2 * t, V_HF))
        a("v_xor_b32 v%d, v%d, v%d" % (V_T0, V_T0, V_T1))
        a("v_lshl_add_u32 v%d, v%d, 4, v%d" % (V_A0 + t, V_T0, V_T2))
    a("v_lshrrev_b32 v%d, 5, v%d" % (V_T0, V_LANE))
    a("v_bfe_u32 v%d, v%d, 2, 2" % (V_T1, V_LANE))
    a("v_lshl_add_u32 v%d, v%d, 3, v%d" % (V_T0, V_T0, V_T1))
    a("v_lshlrev_b32 v%d, 6, v%d" % (V_T0, V_T0))
    a("v_bfe_u32 v%d, v%d, 4, 1" % (V_T1, V_LANE))
    a("v_lshl_add_u32 v%d, v%d, 5, v%d" % (V_T0, V_T1, V_T0))
    a("v_and_b32 v%d, 3, v%d" % (V_T1, V_LANE))
    a("v_lshl_add_u32 v%d, v%d, 3, v%d" % (V_T0, V_T1, V_T0))
    a("s_lshl_b32 s%d, s%d, 10" % (S_T2, S_T1))
    a("s_add_u32 s%d, s%d, %d" % (S_T2, S_T2, W3_BASE))
    a("v_add_u32 v%d, s%d, v%d" % (V_WR, S_T2, V_T0))
    a("s_lshl_b32 s%d, s%d, 16" % (S_AK, S_RB))
    a("s_add_u32 s%d, s%d, 0x%x" % (S_AK, S_AK, O_OFF))
    a("s_lshl_b32 s%d, s%d, 14" % (S_WK, S_T0))

    NST = NST1 + NST2

    def dma_ops(s):
        slot = s % NSLOT3
        ops = []
        if s == NST1:
            ops.append(["s_mul_i32 s%d, s%d, %d" % (S_AK, S_RB, 64 * 2752),
                        "s_add_u32 s%d, s%d, 0x%x" % (S_AK, S_AK, H_OFF),
                        "s_lshr_b32 s%d, s%d, 1" % (S_WK, S_WAVE),
                        "s_lshl_b32 s%d, s%d, 14" % (S_WK, S_WK)])
        ph2 = s >= NST1
        ops.append(["s_add_u32 m0, s%d, %d" % (S_M0A, slot * 4096),
                    "buffer_load_dwordx4 v%d, s[%d:%d], s%d offen lds" % (V_AOFF2 if ph2 else V_AOFF1, S_WS, S_WS + 3, S_AK)])
        sw = S_W2 if ph2 else S_WO
        ops.append(["s_add_u32 m0, s%d, %d" % (S_M0W, slot * 4096),
                    "buffer_load_dwordx4 v%d, s[%d:%d], s%d offen lds" % (V_WOFF, sw, sw + 3, S_WK)])
        ops.append(["s_add_u32 s%d, s%d, 64" % (S_AK, S_AK),
                    "s_add_u32 s%d, s%d, %d" % (S_WK, S_WK, 32 * 1024)])
        return ops

    for s in range(NSLOT3 - 2):
        for grp in dma_ops(s):
            for ins in grp:
                a(ins, tag=("st", s) if ins.startswith("buffer") else None)

    seq = [(s, t) for s in range(NST) for t in range(2)]
    N = len(seq)
    fillers = []
    ftag = [None]

    def emit_reads(g):
        s, t = seq[g]
        slot = s % NSLOT3
        if t == 0:
            a.wait_tag(("st", s))
            a("s_barrier")
            ns = s + NSLOT3 - 2
            if ns < NST:
                fillers.extend(dma_ops(ns))
                ftag[0] = ("st", ns)
        ab = V_AF + 4 * (g % 3)
        wb = V_WF + 4 * (g % 3)
        a("ds_read_b128 v[%d:%d], v%d offset:%d" % (ab, ab + 3, V_A0 + t, slot * 4096))
        off = slot * 4096 + t * 2048
        a("ds_read_b64_tr_b16 v[%d:%d], v%d offset:%d" % (wb, wb + 1, V_WR, off))
        a("ds_read_b64_tr_b16 v[%d:%d], v%d offset:%d" % (wb + 2, wb + 3, V_WR, off + 256))

    for g in range(LA3):
        emit_reads(g)
    for g in range(N):
        if g + LA3 < N:
            emit_reads(g + LA3)
        s, t = seq[g]
        ab = V_AF + 4 * (g % 3)
        wb = V_WF + 4 * (g % 3)
        ac = V_AS if s < NST1 else V_AG
        cop = "0" if (t == 0 and s in (0, NST1)) else "v[%d:%d]" % (ac, ac + 15)
        a("v_mfma_f32_32x32x16_bf16 v[%d:%d], v[%d:%d], v[%d:%d], %s" % (ac, ac + 15, wb, wb + 3, ab, ab + 3, cop))
        while fillers:
            grp = fillers.pop(0)
            for ins in grp:
                a(ins, tag=ftag[0] if ins.startswith("buffer") else None)
    a("s_mov_b32 s%d, 0xbfb8aa3b" % S_T0)
    for i in range(16):
        a("v_mul_f32 v%d, s%d, v%d" % (V_TP + i, S_T0, V_AG + i))
    for i in range(16):
        a("v_exp_f32 v%d, v%d" % (V_TP + i, V_TP + i))
    for i in range(16):
        a("v_add_f32 v%d, 1.0, v%d" % (V_TP + i, V_TP + i))
    for i in range(16):
        a("v_rcp_f32 v%d, v%d" % (V_TP + i, V_TP + i))
    for i in range(16):
        a("v_mul_f32 v%d, v%d, v%d" % (V_AG + i, V_AG + i, V_TP + i))
    for q in range(4):
        for d in range(2):
            i = 4 * q + 2 * d
            xr = V_X + 2 * q + d
            a("v_lshlrev_b32 v%d, 16, v%d" % (V_TP + i, xr))
            a("v_and_b32 v%d, 0xffff0000, v%d" % (V_TP + i + 1, xr))
    for i in range(16):
        a("v_fma_f32 v%d, v%d, v%d, v%d" % (V_AS + i, V_AS + i, V_AG + i, V_TP + i))
    for k in range(8):
        a("v_cvt_pk_bf16_f32 v%d, v%d, v%d" % (V_TP + 16 + k, V_AS + 2 * k, V_AS + 2 * k + 1))
    TB = V_TP + 16
    a("v_permlane32_swap_b32 v%d, v%d" % (TB + 0, TB + 2))
    a("v_permlane32_swap_b32 v%d, v%d" % (TB + 1, TB + 3))
    a("v_permlane32_swap_b32 v%d, v%d" % (TB + 4, TB + 6))
    a("v_permlane32_swap_b32 v%d, v%d" % (TB + 5, TB + 7))
    a("v_lshl_add_u32 v%d, v%d, 3, v%d" % (V_XO, V_HF, V_XO))
    a("buffer_store_dwordx4 v[%d:%d], v%d, s[%d:%d], 0 offen" % (TB, TB + 3, V_XO, S_OUT, S_OUT + 3))
    a("buffer_store_dwordx4 v[%d:%d], v%d, s[%d:%d], 0 offen offset:32" % (TB + 4, TB + 7, V_XO, S_OUT, S_OUT + 3))
    a.label("L_k3_exit")
    a("s_endpgm")
    txt = kernel_header(name) + a.text() + kernel_desc(name, 128, 64)
    return txt, a.stats


if __name__ == "__main__":
    t, st_ = gen_k3()
    print(st_, len(t))
```

```python
import sys
sys.path.insert(0, "work")
from gen_common import *
import gen_k1, gen_k2, gen_k3

def build(path="recurrent_scan__sliding_block__glu_gated_swiglu__prompt.s"):
    t1, s1 = gen_k1.gen_k1()
    t2, s2 = gen_k2.gen_k2()
    t3, s3 = gen_k3.gen_k3()
    hdr = ("; recurrent_scan__sliding_block__glu_gated_swiglu__prompt : 3-kernel pipeline (generated by work/build.py)\n"
           "; K1: LayerNorm-folded GEMM -> Q,K,V fragments + h ; K2: sliding-window attention ; K3: o@wo, h@w2, final gate\n"
           "; @launch kernel=k1_gemm_kernel grid=(256,1,1) block=(512,1,1) lds=%d\n"
           "; @launch kernel=k2_attn_kernel grid=(512,1,1) block=(256,1,1) lds=0\n"
           "; @launch kernel=k3_out_kernel grid=(256,1,1) block=(256,1,1) lds=%d\n"
           '.amdgcn_target "amdgcn-amd-amdhsa--gfx950"\n.text\n' % (gen_k1.LDS_K1, gen_k3.LDS_K3))
    txt = hdr + t1 + t2 + t3
    open(path, "w").write(txt)
    print("k1", s1, "k2", s2, "k3", s3, "bytes", len(txt))

if __name__ == "__main__":
    build(*sys.argv[1:])
```

```python
import sys
sys.path.insert(0, "work")
from asmgen import Asm

QF_OFF = 0
KF_OFF = 2 << 20
VF_OFF = 4 << 20
H_OFF = 8 << 20
O_OFF = 16 << 20
WS_BYTES = 268435456

S = 2048
D = 512
F = 1376


def kernel_header(name):
    return (".p2align 8\n.globl %s\n.type %s,@function\n%s:\n" % (name, name, name))


def kernel_desc(name, vgpr, sgpr, agpr=0, accum=None):
    if accum is None:
        accum = (vgpr + 3) // 4 * 4
    nfv = vgpr if agpr == 0 else accum + agpr
    return ('.section .rodata,"a"\n.p2align 6\n.amdhsa_kernel %s\n'
            '  .amdhsa_next_free_vgpr %d\n  .amdhsa_next_free_sgpr %d\n  .amdhsa_accum_offset %d\n'
            '  .amdhsa_group_segment_fixed_size 0\n  .amdhsa_kernarg_size 80\n'
            '  .amdhsa_user_sgpr_count 2\n  .amdhsa_user_sgpr_kernarg_segment_ptr 1\n'
            '  .amdhsa_system_sgpr_workgroup_id_x 1\n.end_amdhsa_kernel\n.text\n' % (name, nfv, sgpr, accum))


def srd(a, d, base_lo, base_hi, nbytes):
    a("s_mov_b32 s%d, %s" % (d, base_lo))
    a("s_mov_b32 s%d, %s" % (d + 1, base_hi))
    a("s_mov_b32 s%d, 0x%x" % (d + 2, nbytes))
    a("s_mov_b32 s%d, 0x00020000" % (d + 3))


DBG_OFF = 64 << 20
STAMPS = False

def stamp(a, idx, s_ws, s_wave, stmp=(66, 67, 68), vtmp=(94, 95)):
    if not STAMPS:
        return
    s0, s1, s2_ = stmp
    a("s_memtime s[%d:%d]" % (s0, s1))
    a("s_lshl_b32 s%d, s2, 3" % s2_)
    a("s_add_u32 s%d, s%d, s%d" % (s2_, s2_, s_wave))
    a("s_lshl_b32 s%d, s%d, 6" % (s2_, s2_))
    a("s_add_u32 s%d, s%d, 0x%x" % (s2_, s2_, DBG_OFF + 4 * idx))
    a("s_waitcnt lgkmcnt(0)")
    a("v_mov_b32 v%d, s%d" % (vtmp[0], s0))
    a("v_mov_b32 v%d, 0" % vtmp[1])
    a("buffer_store_dword v%d, v%d, s[%d:%d], s%d offen" % (vtmp[0], vtmp[1], s_ws, s_ws + 3, s2_))
```

```python
from gen_common import *

NW = 8
NSLOT = 5
A_WAVE = NSLOT * 2048
W_BASE = NW * A_WAVE
W_UNIT = NSLOT * 2048
LDS_K1 = W_BASE + 6 * W_UNIT
NSTAGE = 16
LA = 3
NB = 4
SCRATCH_OFF = 96 << 20
PREFETCH = False
NOSTATS = False

S_X, S_W, S_WS = 4, 8, 12
S_WAVE, S_RB, S_CG, S_ROT = 16, 17, 18, 19
S_XK0, S_XK1, S_M0A, S_PST = 30, 31, 33, 35
S_WK = 58
S_M0W = 62
S_UNIT = 36
S_T0, S_T1, S_T2, S_T3 = 46, 47, 48, 49
S_HM = 50
S_COL = 52
S_ONES = 54
V_LANE = 1
V_A0, V_A1 = 2, 3
V_W = 4
V_XOFF = 14
V_WOFF = 15
V_L31 = 20
V_T = 21
V_AF = 64
V_WF = 72
V_RS, V_RQ = 88, 89
V_CS = 90
V_ACC = 96


def acc(j):
    return V_ACC + 16 * j


def variant(a, kind):
    ffn = kind == "ffn"
    U = {"qk": 6, "v": 4, "ffn": 4}[kind]
    nslots = 2 if ffn else U
    pitch = 2752 if ffn else 3072
    rowlane = kind != "v"
    nwd = 2 if kind == "qk" else 1

    a.comment("==== K1 variant %s" % kind)
    TT, UU = S_T0, S_T1
    if kind == "qk":
        a("s_cmp_ge_u32 s%d, 6" % S_WAVE)
        a("s_cselect_b32 s%d, 1, 0" % TT)
        a("s_cselect_b32 s%d, 6, 0" % UU)
        a("s_sub_u32 s%d, s%d, s%d" % (UU, S_WAVE, UU))
    else:
        a("s_lshr_b32 s%d, s%d, 2" % (TT, S_WAVE))
        a("s_and_b32 s%d, s%d, 3" % (UU, S_WAVE))
    if ffn:
        a("s_cmp_lt_u32 s%d, 2" % UU)
        a("s_cselect_b32 s%d, s24, s26" % S_W)
        a("s_cselect_b32 s%d, s25, s27" % (S_W + 1))
        a("s_mov_b32 s%d, 0x%x" % (S_W + 2, 512 * 1376 * 2))
        a("s_mov_b32 s%d, 0x00020000" % (S_W + 3))
        a("s_sub_u32 s%d, s%d, 10" % (S_PST, S_CG))
        a("s_lshl_b32 s%d, s%d, 1" % (S_PST, S_PST))
        a("s_and_b32 s%d, s%d, 1" % (S_T2, UU))
        a("s_add_u32 s%d, s%d, s%d" % (S_COL, S_PST, S_T2))
        a("s_min_u32 s%d, s%d, 42" % (S_COL, S_COL))
        a("s_lshl_b32 s%d, s%d, 6" % (S_COL, S_COL))
        a("s_and_b32 s%d, s%d, 1" % (S_ROT, S_WAVE))
    else:
        srd(a, S_W, "s22", "s23", 512 * 1536 * 2)
        if kind == "qk":
            a("s_mul_i32 s%d, s%d, 6" % (S_PST, S_CG))
            a("s_cmp_ge_u32 s%d, 6" % S_WAVE)
            a("s_cselect_b32 s%d, 6, 0" % S_T2)
            a("s_sub_u32 s%d, s%d, s%d" % (S_ROT, S_WAVE, S_T2))
        else:
            a("s_sub_u32 s%d, s%d, 6" % (S_PST, S_CG))
            a("s_lshl_b32 s%d, s%d, 2" % (S_PST, S_PST))
            a("s_add_u32 s%d, s%d, 32" % (S_PST, S_PST))
            a("s_and_b32 s%d, s%d, 3" % (S_ROT, S_WAVE))
        a("s_add_u32 s%d, s%d, s%d" % (S_COL, S_PST, UU))
        a("s_min_u32 s%d, s%d, 47" % (S_COL, S_COL))
        a("s_lshl_b32 s%d, s%d, 6" % (S_COL, S_COL))
        if kind == "qk":
            a("s_and_b32 s%d, s%d, 3" % (S_T2, S_WAVE))
            a("s_add_u32 s%d, s%d, 2" % (S_T2, S_T2))
            a("s_add_u32 s%d, s%d, s%d" % (S_COL + 1, S_PST, S_T2))
            a("s_min_u32 s%d, s%d, 31" % (S_COL + 1, S_COL + 1))
            a("s_lshl_b32 s%d, s%d, 6" % (S_COL + 1, S_COL + 1))
            a("s_min_u32 s%d, s%d, %d" % (S_COL, S_COL, 31 * 64))
            a("s_mul_i32 s%d, s%d, %d" % (S_M0W + 1, S_T2, W_UNIT))
            a("s_add_u32 s%d, s%d, %d" % (S_M0W + 1, S_M0W + 1, W_BASE + 1024))
            a("s_mov_b32 s%d, %d" % (S_WK + 1, 16 * pitch))
    a("s_mul_i32 s%d, s%d, %d" % (S_M0W, UU, W_UNIT))
    a("s_lshl_b32 s%d, s%d, 10" % (S_T2, TT))
    a("s_add_u32 s%d, s%d, s%d" % (S_M0W, S_M0W, S_T2))
    a("s_add_u32 s%d, s%d, %d" % (S_M0W, S_M0W, W_BASE))
    a("s_mul_i32 s%d, s%d, %d" % (S_WK, TT, 16 * pitch))
    for j in range(nslots):
        a("s_add_u32 s%d, s%d, %d" % (S_UNIT + j, S_ROT, j))
        a("s_cmp_ge_u32 s%d, %d" % (S_UNIT + j, nslots))
        a("s_cselect_b32 s%d, %d, 0" % (S_T2, nslots))
        a("s_sub_u32 s%d, s%d, s%d" % (S_UNIT + j, S_UNIT + j, S_T2))
    a("s_lshl_b32 s%d, s%d, 18" % (S_XK0, S_RB))
    a("s_add_u32 s%d, s%d, 16384" % (S_XK1, S_XK0))
    a("s_mul_i32 s%d, s%d, %d" % (S_M0A, S_WAVE, A_WAVE))
    a("v_lshrrev_b32 v%d, 2, v%d" % (V_T, V_LANE))
    a("v_lshlrev_b32 v%d, 10, v%d" % (V_T, V_T))
    a("s_lshl_b32 s%d, s%d, 15" % (S_T2, S_WAVE))
    a("v_add_u32 v%d, s%d, v%d" % (V_XOFF, S_T2, V_T))
    a("v_lshrrev_b32 v%d, 4, v%d" % (V_T, V_LANE))
    a("v_xor_b32 v%d, v%d, v%d" % (V_T, V_T, V_LANE))
    a("v_and_b32 v%d, 3, v%d" % (V_T, V_T))
    a("v_lshl_add_u32 v%d, v%d, 4, v%d" % (V_XOFF, V_T, V_XOFF))
    a("v_lshrrev_b32 v%d, 2, v%d" % (V_T, V_LANE))
    a("s_movk_i32 s%d, %d" % (S_T2, pitch))
    a("v_mul_lo_u32 v%d, v%d, s%d" % (V_T, V_T, S_T2))
    a("v_and_b32 v%d, 3, v%d" % (V_T + 1, V_LANE))
    a("v_lshl_add_u32 v%d, v%d, 4, v%d" % (V_T, V_T + 1, V_T))
    for k in range(nwd):
        a("v_add_u32 v%d, s%d, v%d" % (V_WOFF + k, S_COL + k, V_T))
    a("v_lshrrev_b32 v%d, 5, v%d" % (V_T, V_LANE))
    a("v_bfe_u32 v%d, v%d, 2, 2" % (V_T + 1, V_LANE))
    a("v_lshlrev_b32 v%d, 6, v%d" % (V_T + 2, V_L31))
    a("v_add_u32 v%d, s%d, v%d" % (V_T + 2, S_M0A, V_T + 2))
    for t in range(2):
        a("v_add_u32 v%d, %d, v%d" % (V_T + 3, 2 * t, V_T))
        a("v_xor_b32 v%d, v%d, v%d" % (V_T + 3, V_T + 3, V_T + 1))
        a("v_lshl_add_u32 v%d, v%d, 4, v%d" % (V_A0 + t, V_T + 3, V_T + 2))
    a("v_lshrrev_b32 v%d, 5, v%d" % (V_T, V_LANE))
    a("v_bfe_u32 v%d, v%d, 2, 2" % (V_T + 1, V_LANE))
    a("v_lshl_add_u32 v%d, v%d, 3, v%d" % (V_T, V_T, V_T + 1))
    a("v_lshlrev_b32 v%d, 6, v%d" % (V_T, V_T))
    a("v_bfe_u32 v%d, v%d, 4, 1" % (V_T + 1, V_LANE))
    a("v_lshl_add_u32 v%d, v%d, 5, v%d" % (V_T, V_T + 1, V_T))
    a("v_and_b32 v%d, 3, v%d" % (V_T + 1, V_LANE))
    a("v_lshl_add_u32 v%d, v%d, 3, v%d" % (V_T, V_T + 1, V_T))
    for j in range(nslots):
        a("s_mul_i32 s%d, s%d, %d" % (S_T2, S_UNIT + j, W_UNIT))
        a("s_add_u32 s%d, s%d, %d" % (S_T2, S_T2, W_BASE))
        a("v_add_u32 v%d, s%d, v%d" % (V_W + j, S_T2, V_T))
    a("v_mov_b32 v%d, 0" % V_RS)
    a("v_mov_b32 v%d, 0" % V_RQ)
    for c in range(2):
        a("v_mov_b32 v%d, 0" % (V_CS + c))
    a("s_mov_b32 s%d, 0x3f803f80" % S_ONES)

    def dma_ops(s):
        slot = s % NSLOT
        ops = []
        for i in range(2):
            ops.append(["s_add_u32 m0, s%d, %d" % (S_M0A, slot * 2048 + 1024 * i),
                        "buffer_load_dwordx4 v%d, s[%d:%d], s%d offen lds" % (V_XOFF, S_X, S_X + 3, S_XK0 + i)])
        for k in range(nwd):
            ops.append(["s_add_u32 m0, s%d, %d" % (S_M0W + k, slot * 2048),
                        "buffer_load_dwordx4 v%d, s[%d:%d], s%d offen lds" % (V_WOFF + k, S_W, S_W + 3, S_WK + k)])
        last = ["s_add_u32 s%d, s%d, 64" % (S_XK0, S_XK0), "s_add_u32 s%d, s%d, 64" % (S_XK1, S_XK1)]
        for k in range(nwd):
            last.append("s_add_u32 s%d, s%d, %d" % (S_WK + k, S_WK + k, 32 * pitch))
        ops.append(last)
        return ops

    stamp(a, 0, S_WS, S_WAVE)
    if PREFETCH:
        a("v_lshrrev_b32 v%d, 3, v%d" % (V_T, V_LANE))
        a("v_and_b32 v%d, 7, v%d" % (V_T + 1, V_LANE))
        a("v_lshlrev_b32 v%d, 10, v%d" % (V_T, V_T))
        a("v_lshl_add_u32 v%d, v%d, 7, v%d" % (V_T, V_T + 1, V_T))
        a("s_lshl_b32 s%d, s%d, 15" % (S_T2, S_WAVE))
        a("s_add_u32 s%d, s%d, s%d" % (S_T2, S_T2, S_XK0))
        for i in range(4):
            a("buffer_load_dword v%d, v%d, s[%d:%d], s%d offen offset:%d" % (V_T + 2, V_T, S_X, S_X + 3, S_T2, 0))
            a("s_add_u32 s%d, s%d, 8192" % (S_T2, S_T2))
        a("v_and_b32 v%d, 63, v%d" % (V_T, V_LANE))
        a("s_movk_i32 s%d, %d" % (S_T2, pitch))
        a("v_mul_lo_u32 v%d, v%d, s%d" % (V_T, V_T, S_T2))
        a("s_mul_i32 s%d, s%d, %d" % (S_T3, S_WAVE, 64 * pitch))
        a("s_mul_i32 s%d, s%d, 64" % (S_T2, S_PST))
        a("s_and_b32 s%d, s%d, 0xffffff80" % (S_T2, S_T2))
        a("s_add_u32 s%d, s%d, s%d" % (S_T2, S_T2, S_T3))
        nl = 4 if kind == "qk" else (3 if kind == "v" else 2)
        for i in range(nl):
            a("buffer_load_dword v%d, v%d, s[%d:%d], s%d offen offset:%d" % (V_T + 2, V_T, S_W, S_W + 3, S_T2, 128 * i))
    for s in range(NSLOT - 2):
        for grp in dma_ops(s):
            for ins in grp:
                a(ins, tag=("st", s) if ins.startswith("buffer") else None)

    seq = []
    for s in range(NSTAGE):
        for t in range(2):
            for j in range(nslots):
                for half in range(2 if ffn else 1):
                    seq.append((s, t, j, half))
    N = len(seq)
    wbuf = lambda g: V_WF + 4 * (g % NB)
    abuf = lambda s, t: V_AF + 4 * ((2 * s + t) % 2)
    fillers = []
    filler_tag = [None]

    def emit_reads(g):
        s, t, j, half = seq[g]
        slot = s % NSLOT
        if t == 0 and j == 0 and half == 0:
            a.wait_tag(("st", s))
            a("s_barrier")
            if s in (0, 4, 8, 12):
                stamp(a, 1 + s // 4, S_WS, S_WAVE)
            ns = s + NSLOT - 2
            if ns < NSTAGE:
                fillers.extend(dma_ops(ns))
                filler_tag[0] = ("st", ns)
        if j == 0 and half == 0:
            a("ds_read_b128 v[%d:%d], v%d offset:%d" % (abuf(s, t), abuf(s, t) + 3, V_A0 + t, slot * 2048))
        off = slot * 2048 + t * 1024 + half * 2 * W_UNIT
        b = wbuf(g)
        a("ds_read_b64_tr_b16 v[%d:%d], v%d offset:%d" % (b, b + 1, V_W + j, off))
        a("ds_read_b64_tr_b16 v[%d:%d], v%d offset:%d" % (b + 2, b + 3, V_W + j, off + 256))

    def emit_filler():
        if fillers:
            grp = fillers.pop(0)
            for ins in grp:
                a(ins, tag=filler_tag[0] if ins.startswith("buffer") else None)

    for g in range(min(LA, N)):
        emit_reads(g)
    for g in range(N):
        if g + LA < N:
            emit_reads(g + LA)
        s, t, j, half = seq[g]
        tile = 2 * j + half if ffn else j
        b = wbuf(g)
        ab = abuf(s, t)
        cop = "0" if (s == 0 and t == 0) else "v[%d:%d]" % (acc(tile), acc(tile) + 15)
        if rowlane:
            a("v_mfma_f32_32x32x16_bf16 v[%d:%d], v[%d:%d], v[%d:%d], %s" % (acc(tile), acc(tile) + 15, b, b + 3, ab, ab + 3, cop))
        else:
            a("v_mfma_f32_32x32x16_bf16 v[%d:%d], v[%d:%d], v[%d:%d], %s" % (acc(tile), acc(tile) + 15, ab, ab + 3, b, b + 3, cop))
        if j == 0 and half == 0 and not NOSTATS:
            for r in range(4):
                a("v_dot2_f32_bf16 v%d, v%d, s%d, v%d" % (V_RS, ab + r, S_ONES, V_RS))
                a("v_dot2_f32_bf16 v%d, v%d, v%d, v%d" % (V_RQ, ab + r, ab + r, V_RQ))
        if j == 0 and not NOSTATS:
            c = V_CS + half
            for r in range(4):
                a("v_dot2_f32_bf16 v%d, v%d, s%d, v%d" % (c, b + r, S_ONES, c))
        emit_filler()
    while fillers:
        emit_filler()
    stamp(a, 5, S_WS, S_WAVE)

    T0, T1 = V_T, V_T + 1
    def half_sum(v):
        a("v_mov_b32 v%d, v%d" % (T0, v))
        a("v_mov_b32 v%d, v%d" % (T1, v))
        a("v_permlane32_swap_b32 v%d, v%d" % (T0, T1))
        a("v_add_f32 v%d, v%d, v%d" % (v, T0, T1))
    half_sum(V_RS)
    half_sum(V_RQ)
    ncsu = 2 if ffn else 1
    for c in range(ncsu):
        half_sum(V_CS + c)
    V_MEAN, V_VE, V_RSTD = V_T + 2, V_T + 3, V_T + 4
    a("v_mul_f32 v%d, 0x3b000000, v%d" % (V_MEAN, V_RS))
    a("v_mul_f32 v%d, 0x3b000000, v%d" % (V_VE, V_RQ))
    a("v_fma_f32 v%d, -v%d, v%d, v%d" % (V_VE, V_MEAN, V_MEAN, V_VE))
    a("v_add_f32 v%d, 0x3727c5ac, v%d" % (V_VE, V_VE))
    a("v_rsq_f32 v%d, v%d" % (V_RSTD, V_VE))
    a("s_waitcnt lgkmcnt(0)")
    a("s_barrier")
    a("v_lshlrev_b32 v%d, 2, v%d" % (T0, V_L31))
    for c in range(ncsu):
        a("s_lshl_b32 s%d, s%d, 7" % (S_T2, S_UNIT))
        if c:
            a("s_add_u32 s%d, s%d, %d" % (S_T2, S_T2, 2 * 128))
        a("v_add_u32 v%d, s%d, v%d" % (T1, S_T2, T0))
        a("ds_write_b32 v%d, v%d" % (T1, V_CS + c))
    a("s_waitcnt lgkmcnt(0)")
    a("s_barrier")
    ntiles = U
    V_CT = 32
    for tile in range(ntiles):
        j, half = (tile // 2, tile % 2) if ffn else (tile, 0)
        a("s_lshl_b32 s%d, s%d, 7" % (S_T2, S_UNIT + j))
        if half:
            a("s_add_u32 s%d, s%d, %d" % (S_T2, S_T2, 2 * 128))
        a("v_add_u32 v%d, s%d, v%d" % (T1, S_T2, T0))
        a("ds_read_b32 v%d, v%d" % (V_CT + tile, T1))
    XQ, CQ = 44, 48
    a("v_mov_b32 v%d, 0" % (XQ + 2)); a("v_mov_b32 v%d, 0" % (XQ + 3))
    a("v_mov_b32 v%d, 0" % (CQ + 2)); a("v_mov_b32 v%d, 0" % (CQ + 3))
    a("v_sub_f32 v%d, 0, v%d" % (T0, V_MEAN))
    a("v_cndmask_b32 v%d, v%d, 0, s[%d:%d]" % (T0, T0, S_HM, S_HM + 1))
    a("v_cvt_pk_bf16_f32 v%d, v%d, v%d" % (XQ, T0, T0))
    a("v_lshlrev_b32 v%d, 16, v%d" % (T1, XQ))
    a("v_sub_f32 v%d, v%d, v%d" % (T1, T0, T1))
    a("v_cvt_pk_bf16_f32 v%d, v%d, v%d" % (XQ, T0, T1))
    a("v_mov_b32 v%d, v%d" % (XQ + 1, XQ))
    for tile in range(ntiles):
        a("v_cndmask_b32 v%d, v%d, 0, s[%d:%d]" % (T0, V_CT + tile, S_HM, S_HM + 1))
        a("v_cvt_pk_bf16_f32 v%d, v%d, v%d" % (CQ, T0, T0))
        a("v_lshlrev_b32 v%d, 16, v%d" % (T1, CQ))
        a("v_sub_f32 v%d, v%d, v%d" % (T1, T0, T1))
        a("v_cvt_pk_bf16_f32 v%d, v%d, v%d" % (CQ + 1, T1, T1))
        if rowlane:
            a("v_mfma_f32_32x32x16_bf16 v[%d:%d], v[%d:%d], v[%d:%d], v[%d:%d]" % (acc(tile), acc(tile) + 15, CQ, CQ + 3, XQ, XQ + 3, acc(tile), acc(tile) + 15))
        else:
            a("v_mfma_f32_32x32x16_bf16 v[%d:%d], v[%d:%d], v[%d:%d], v[%d:%d]" % (acc(tile), acc(tile) + 15, XQ, XQ + 3, CQ, CQ + 3, acc(tile), acc(tile) + 15))
    stamp(a, 6, S_WS, S_WAVE)

    V_VOFF = V_T + 5
    V_RP = 52
    if kind == "qk":
        a("v_mov_b32 v%d, v%d" % (V_RP, V_RSTD)); a("v_mov_b32 v%d, v%d" % (V_RP + 1, V_RSTD))
        a("v_lshlrev_b32 v%d, 5, v%d" % (V_VOFF, V_L31))
        a("v_lshrrev_b32 v%d, 5, v%d" % (T0, V_LANE))
        a("v_lshl_add_u32 v%d, v%d, 4, v%d" % (V_VOFF, T0, V_VOFF))
        a("s_lshl_b32 s%d, s%d, 10" % (S_T2, S_WAVE))
        a("v_add_u32 v%d, s%d, v%d" % (V_VOFF, S_T2, V_VOFF))
        a("s_lshl_b32 s%d, s%d, 13" % (S_T0, S_RB))
        for j in range(U):
            A0 = acc(j)
            tb = 56 if j % 2 == 0 else 32
            for i in range(0, 16, 2):
                a("v_pk_mul_f32 v[%d:%d], v[%d:%d], v[%d:%d]" % (A0 + i, A0 + i + 1, A0 + i, A0 + i + 1, V_RP, V_RP + 1))
            for i in range(0, 16, 2):
                a("v_cvt_pk_bf16_f32 v%d, v%d, v%d" % (tb + i // 2, A0 + i, A0 + i + 1))
            a("s_add_u32 s%d, s%d, s%d" % (S_T1, S_PST, S_UNIT + j))
            a("s_lshl_b32 s%d, s%d, 17" % (S_T2, S_T1))
            a("s_add_u32 s%d, s%d, s%d" % (S_T2, S_T2, S_T0))
            a("s_cmp_gt_u32 s%d, 31" % S_T1)
            a("s_cselect_b32 s%d, 0x%x, s%d" % (S_T2, SCRATCH_OFF, S_T2))
            a("s_add_u32 s%d, s%d, 65536" % (S_T3, S_T2))
            a("buffer_store_dwordx4 v[%d:%d], v%d, s[%d:%d], s%d offen" % (tb, tb + 3, V_VOFF, S_WS, S_WS + 3, S_T2))
            a("buffer_store_dwordx4 v[%d:%d], v%d, s[%d:%d], s%d offen" % (tb + 4, tb + 7, V_VOFF, S_WS, S_WS + 3, S_T3))
    elif kind == "v":
        TT_ = 32
        a("v_lshrrev_b32 v%d, 5, v%d" % (T0, V_LANE))
        a("v_lshlrev_b32 v%d, 4, v%d" % (T0, T0))
        for i in range(16):
            a("v_add_u32 v%d, %d, v%d" % (T1, 4 * (8 * (i >> 2) + (i & 3)), T0))
            a("ds_bpermute_b32 v%d, v%d, v%d" % (TT_ + i, T1, V_RSTD))
        a("v_lshrrev_b32 v%d, 4, v%d" % (V_VOFF, V_L31))
        a("v_lshlrev_b32 v%d, 16, v%d" % (V_VOFF, V_VOFF))
        a("v_and_b32 v%d, 15, v%d" % (T1, V_L31))
        a("v_lshl_add_u32 v%d, v%d, 5, v%d" % (V_VOFF, T1, V_VOFF))
        a("v_add_u32 v%d, v%d, v%d" % (V_VOFF, T0, V_VOFF))
        a("s_lshl_b32 s%d, s%d, 4" % (S_T0, S_RB))
        a("s_lshl_b32 s%d, s%d, 1" % (S_T1, S_WAVE))
        a("s_add_u32 s%d, s%d, s%d" % (S_T0, S_T0, S_T1))
        a("s_lshl_b32 s%d, s%d, 9" % (S_T0, S_T0))
        a("s_add_u32 s%d, s%d, 0x%x" % (S_T0, S_T0, VF_OFF))
        for j in range(U):
            A0 = acc(j)
            tb = 56 if j % 2 == 0 else 48
            for i in range(0, 16, 2):
                a("v_pk_mul_f32 v[%d:%d], v[%d:%d], v[%d:%d]" % (A0 + i, A0 + i + 1, A0 + i, A0 + i + 1, TT_ + i, TT_ + i + 1))
            for i in range(0, 16, 2):
                a("v_cvt_pk_bf16_f32 v%d, v%d, v%d" % (tb + i // 2, A0 + i, A0 + i + 1))
            a("s_add_u32 s%d, s%d, s%d" % (S_T1, S_PST, S_UNIT + j))
            a("s_sub_u32 s%d, s%d, 32" % (S_T1, S_T1))
            a("s_lshl_b32 s%d, s%d, 17" % (S_T2, S_T1))
            a("s_add_u32 s%d, s%d, s%d" % (S_T2, S_T2, S_T0))
            a("s_add_u32 s%d, s%d, 512" % (S_T3, S_T2))
            a("buffer_store_dwordx4 v[%d:%d], v%d, s[%d:%d], s%d offen" % (tb, tb + 3, V_VOFF, S_WS, S_WS + 3, S_T2))
            a("buffer_store_dwordx4 v[%d:%d], v%d, s[%d:%d], s%d offen" % (tb + 4, tb + 7, V_VOFF, S_WS, S_WS + 3, S_T3))
    else:
        C1, IC2 = 52, 54
        a("v_mul_f32 v%d, 0xbfb8aa3b, v%d" % (C1, V_RSTD))
        a("v_mov_b32 v%d, v%d" % (C1 + 1, C1))
        a("v_mov_b32 v%d, v%d" % (IC2, V_VE)); a("v_mov_b32 v%d, v%d" % (IC2 + 1, V_VE))
        a("s_movk_i32 s%d, 2752" % S_T2)
        a("v_mul_lo_u32 v%d, v%d, s%d" % (V_VOFF, V_L31, S_T2))
        a("v_lshrrev_b32 v%d, 5, v%d" % (T0, V_LANE))
        a("v_lshl_add_u32 v%d, v%d, 4, v%d" % (V_VOFF, T0, V_VOFF))
        a("s_mul_i32 s%d, s%d, %d" % (S_T2, S_WAVE, 32 * 2752))
        a("v_add_u32 v%d, s%d, v%d" % (V_VOFF, S_T2, V_VOFF))
        a("s_mul_i32 s%d, s%d, %d" % (S_T0, S_RB, 256 * 2752))
        a("s_add_u32 s%d, s%d, 0x%x" % (S_T0, S_T0, H_OFF))
        for jp in range(2):
            G, Uu = acc(2 * jp), acc(2 * jp + 1)
            tb = 56
            TP = 32
            for i in range(0, 16, 2):
                tp = TP + i
                a("v_pk_mul_f32 v[%d:%d], v[%d:%d], v[%d:%d]" % (tp, tp + 1, G + i, G + i + 1, C1, C1 + 1))
            for i in range(0, 16, 2):
                tp = TP + i
                a("v_exp_f32 v%d, v%d" % (tp, tp))
                a("v_exp_f32 v%d, v%d" % (tp + 1, tp + 1))
                a("v_pk_mul_f32 v[%d:%d], v[%d:%d], v[%d:%d]" % (G + i, G + i + 1, G + i, G + i + 1, Uu + i, Uu + i + 1))
            for i in range(0, 16, 2):
                tp = TP + i
                a("v_pk_fma_f32 v[%d:%d], v[%d:%d], v[%d:%d], v[%d:%d]" % (tp, tp + 1, tp, tp + 1, IC2, IC2 + 1, IC2, IC2 + 1))
            for i in range(0, 16, 2):
                tp = TP + i
                a("v_rcp_f32 v%d, v%d" % (tp, tp))
                a("v_rcp_f32 v%d, v%d" % (tp + 1, tp + 1))
            for i in range(0, 16, 2):
                tp = TP + i
                a("v_pk_mul_f32 v[%d:%d], v[%d:%d], v[%d:%d]" % (G + i, G + i + 1, G + i, G + i + 1, tp, tp + 1))
            for i in range(0, 16, 2):
                a("v_cvt_pk_bf16_f32 v%d, v%d, v%d" % (tb + i // 2, G + i, G + i + 1))
            a("v_permlane32_swap_b32 v%d, v%d" % (tb + 0, tb + 2))
            a("v_permlane32_swap_b32 v%d, v%d" % (tb + 1, tb + 3))
            a("v_permlane32_swap_b32 v%d, v%d" % (tb + 4, tb + 6))
            a("v_permlane32_swap_b32 v%d, v%d" % (tb + 5, tb + 7))
            a("s_add_u32 s%d, s%d, s%d" % (S_T1, S_PST, S_UNIT + jp))
            a("s_lshl_b32 s%d, s%d, 6" % (S_T2, S_T1))
            a("s_add_u32 s%d, s%d, s%d" % (S_T2, S_T2, S_T0))
            a("s_cmp_gt_u32 s%d, 42" % S_T1)
            a("s_cselect_b32 s%d, 0x%x, s%d" % (S_T2, SCRATCH_OFF, S_T2))
            a("buffer_store_dwordx4 v[%d:%d], v%d, s[%d:%d], s%d offen" % (tb, tb + 3, V_VOFF, S_WS, S_WS + 3, S_T2))
            a("buffer_store_dwordx4 v[%d:%d], v%d, s[%d:%d], s%d offen offset:32" % (tb + 4, tb + 7, V_VOFF, S_WS, S_WS + 3, S_T2))
            if jp == 0:
                tb = 56
    stamp(a, 7, S_WS, S_WAVE)
    a("s_endpgm")


def gen_k1(name="k1_gemm_kernel"):
    a = Asm()
    a("s_cmp_ge_u32 s2, 256")
    a("s_cbranch_scc1 L_k1_exit")
    a("s_load_dwordx2 s[20:21], s[0:1], 0")
    a("s_load_dwordx2 s[22:23], s[0:1], 8")
    a("s_load_dwordx2 s[24:25], s[0:1], 32")
    a("s_load_dwordx2 s[26:27], s[0:1], 40")
    a("s_load_dwordx2 s[28:29], s[0:1], 72")
    a("v_and_b32 v%d, 63, v0" % V_LANE)
    a("v_and_b32 v%d, 31, v0" % V_L31)
    a("v_lshrrev_b32 v%d, 6, v0" % V_T)
    a("v_readfirstlane_b32 s%d, v%d" % (S_WAVE, V_T))
    a("s_lshr_b32 s%d, s2, 5" % S_RB)
    a("s_and_b32 s%d, s2, 7" % S_CG)
    a("s_lshl_b32 s%d, s%d, 2" % (S_CG, S_CG))
    a("s_bfe_u32 s%d, s2, 0x20003" % S_T0)
    a("s_add_u32 s%d, s%d, s%d" % (S_CG, S_CG, S_T0))
    a("s_mov_b32 s%d, 0" % S_HM)
    a("s_mov_b32 s%d, -1" % (S_HM + 1))
    a("s_waitcnt lgkmcnt(0)")
    srd(a, S_X, "s20", "s21", S * D * 2)
    srd(a, S_WS, "s28", "s29", WS_BYTES)
    a("s_cmp_ge_u32 s%d, 10" % S_CG)
    a("s_cbranch_scc1 L_k1_ffn")
    a("s_cmp_ge_u32 s%d, 6" % S_CG)
    a("s_cbranch_scc1 L_k1_v")
    variant(a, "qk")
    a.label("L_k1_v")
    variant(a, "v")
    a.label("L_k1_ffn")
    variant(a, "ffn")
    a.label("L_k1_exit")
    a("s_endpgm")
    txt = kernel_header(name) + a.text() + kernel_desc(name, 192, 72)
    return txt, a.stats


if __name__ == "__main__":
    t, st = gen_k1()
    print(st, len(t))
```
